```python
import torch

def _softmax(x, axis=-1):
    return torch.softmax(x, dim=axis)
def _gelu(x):
    return torch.nn.functional.gelu(x, approximate="tanh")
def _silu(x):
    return torch.nn.functional.silu(x)
def _sigmoid(x):
    return torch.sigmoid(x)
def _layernorm(x, axis=-1, eps=1e-5):
    m = x.mean(dim=axis, keepdim=True)
    v = x.var(dim=axis, keepdim=True, unbiased=False)
    return (x - m) / torch.sqrt(v + eps)
def _scatter_add(tgt, idx, src, axis=0):
    return tgt.clone().index_add_(axis, idx, src)
def _segment_sum(src, seg, n):
    out = torch.zeros((n,) + src.shape[1:], dtype=src.dtype)
    return out.index_add_(0, seg, src)
def _pad(x, pw):
    flat = tuple(v for pair in reversed(pw) for v in pair)
    return torch.nn.functional.pad(x, flat)

kernel_name = 'gated_mix__grouped_kv_mqa__glu_gated_swiglu__prompt'

def setup_inputs():

    _w = (lambda a: (lambda t: t.to(torch.bfloat16) if t.is_floating_point() else t)(torch.as_tensor(a)))
    def _A_setup():
        B, S, D, H = 1, 2048, 640, 32
        Dh = D // H
        return {
            "x": _w((lambda *s: torch.randn(*s, dtype=torch.bfloat16) * 0.05)(B, S, D)),
            "wq": _w((lambda *s: torch.randn(*s, dtype=torch.bfloat16) * 0.8)(D, H * Dh)),
            "wk": _w((lambda *s: torch.randn(*s, dtype=torch.bfloat16) * 0.8)(D, Dh)),
            "wv": _w((lambda *s: torch.randn(*s, dtype=torch.bfloat16) * 0.05)(D, Dh)),
            "wo": _w((lambda *s: torch.randn(*s, dtype=torch.bfloat16) * 0.05)(H * Dh, D)),
        }
    _A_in = _A_setup()

    def _B_setup():
        B, S, D, F = 1, 2048, 640, 1536
        return {
            "x": _w((lambda *s: torch.randn(*s, dtype=torch.bfloat16) * 0.05)(B, S, D)),
            "w1": _w((lambda *s: torch.randn(*s, dtype=torch.bfloat16) * 0.8)(D, F) * (2.0 / D) ** 0.5),
            "w3": _w((lambda *s: torch.randn(*s, dtype=torch.bfloat16) * 0.8)(D, F) * (2.0 / D) ** 0.5),
            "w2": _w((lambda *s: torch.randn(*s, dtype=torch.bfloat16) * 0.8)(F, D) * (2.0 / F) ** 0.5),
        }
    _B_in = _B_setup()

    return {
        "A_x": _A_in["x"],
        "A_wq": _A_in["wq"],
        "A_wk": _A_in["wk"],
        "A_wv": _A_in["wv"],
        "A_wo": _A_in["wo"],
        "B_x": _B_in["x"],
        "B_w1": _B_in["w1"],
        "B_w3": _B_in["w3"],
        "B_w2": _B_in["w2"],
        "gate_w": _w((lambda *s: torch.randn(*s, dtype=torch.bfloat16) * 0.05)(640) * 16.0),
    }

def reference(A_x, A_wq, A_wk, A_wv, A_wo, B_x, B_w1, B_w3, B_w2, gate_w):
    def _A_ref(x, wq, wk, wv, wo):
        B, S, D = x.shape
        H = 32
        Dh = D // H
        q = (lambda x, *d: x.permute(*d))((x @ wq).reshape(B, S, H, Dh), 0, 2, 1, 3)
        k = x @ wk
        v = x @ wv
        scores = torch.einsum("bhqd,bkd->bhqk", q, k) * (Dh ** -0.5)
        p = _softmax(scores, axis=-1)
        o = torch.einsum("bhqk,bkd->bhqd", p, v)
        return (lambda x, *d: x.permute(*d))(o, 0, 2, 1, 3).reshape(B, S, H * Dh) @ wo

    def _B_ref(x, w1, w3, w2):
        gate = torch.einsum("bsd,df->bsf", x, w1)
        up = torch.einsum("bsd,df->bsf", x, w3)
        h = _silu(gate) * up
        out = torch.einsum("bsf,fd->bsd", h, w2)
        return out

    x = A_x
    g = _sigmoid((x * gate_w).sum(-1, keepdims=True))
    a = _A_ref(x, A_wq, A_wk, A_wv, A_wo)
    b = _B_ref(x, B_w1, B_w3, B_w2)
    return g * a + (1 - g) * b
```

```python
class Kern:
    def __init__(self):
        self.lines = []
        self.uid = 0
    def e(self, s):
        for ln in s.split('\n'):
            ln = ln.strip()
            if ln: self.lines.append('  ' + ln)
    def c(self, s): self.lines.append('  ; ' + s)
    def label(self, n): self.lines.append(n + ':')
    def newlabel(self, p='L'):
        self.uid += 1
        return f'{p}_{self.uid}'
    def text(self): return '\n'.join(self.lines) + '\n'

def V(i, n=1): return f'v{i}' if n == 1 else f'v[{i}:{i+n-1}]'
def S(i, n=1): return f's{i}' if n == 1 else f's[{i}:{i+n-1}]'

def srd(k, d, ptr, nbytes):
    k.e(f's_mov_b32 s{d}, s{ptr}')
    k.e(f's_mov_b32 s{d+1}, s{ptr+1}')
    k.e(f's_mov_b32 s{d+2}, {nbytes:#x}')
    k.e(f's_mov_b32 s{d+3}, 0x00020000')

def kernel_text(name, body, vgpr, accum=None):
    accum = accum or vgpr
    return f'''.text
.globl {name}
.p2align 8
.type {name},@function
{name}:
{body}
  s_endpgm
.section .rodata,"a"
.p2align 6
.amdhsa_kernel {name}
  .amdhsa_next_free_vgpr {vgpr}
  .amdhsa_next_free_sgpr 102
  .amdhsa_accum_offset {accum}
  .amdhsa_group_segment_fixed_size 0
  .amdhsa_kernarg_size 104
  .amdhsa_user_sgpr_count 2
  .amdhsa_user_sgpr_kernarg_segment_ptr 1
  .amdhsa_system_sgpr_workgroup_id_x 1
.end_amdhsa_kernel
'''
HEADER = open('gated_mix__grouped_kv_mqa__glu_gated_swiglu__prompt.s.ref').read().split('; Override launch geometry')[0]
def file_text(launches, kernels):
    t = HEADER
    if len(launches) == 1 and launches[0][0] == 'gated_mix__grouped_kv_mqa__glu_gated_swiglu__prompt_kernel':
        n, gx, bx, lds = launches[0]
        t += f'; @launch grid=({gx},1,1) block=({bx},1,1) lds={lds}\n'
    else:
        for n, gx, bx, lds in launches:
            t += f'; @launch kernel={n} grid=({gx},1,1) block=({bx},1,1) lds={lds}\n'
    t += '.amdgcn_target "amdgcn-amd-amdhsa--gfx950"\n'
    t += '\n'.join(kernels)
    return t

WS_DIAG = 0xF00000
def stamp(k, i, real=True):
    k.e(f's_mem{"real" if real else ""}time s[{60+2*i}:{61+2*i}]')
def stamp_dump(k, n, srd_ws, wg_sreg, wave_sreg, vt=(2,3), wv=0):
    lab = k.newlabel('nodump')
    k.e('s_waitcnt lgkmcnt(0)')
    k.e(f's_cmp_lg_u32 s{wave_sreg}, {wv}')
    k.e(f's_cbranch_scc1 {lab}')
    k.e(f's_lshl_b32 s58, s{wg_sreg}, 6')
    k.e(f's_add_u32 s58, s58, {WS_DIAG}')
    k.e(f'v_mov_b32 v{vt[0]}, 0')
    k.e('s_mov_b64 exec, 1')
    for i in range(n):
        k.e(f'v_mov_b32 v{vt[1]}, s{60+2*i}')
        k.e(f'buffer_store_dword v{vt[1]}, v{vt[0]}, s[{srd_ws}:{srd_ws+3}], s58 offen offset:{4*i}')
        k.e('s_nop 1')
    k.e('s_waitcnt vmcnt(0)')
    k.e('s_mov_b64 exec, -1')
    k.label(lab)
```

```python
from dsl import *
def pf_rows(k, srd, vdst, vt, lane, s_t, row0_sreg, nrows, row_bytes, seg_off_sreg, seg_lines, stride=128, first_wave=None, s_wave=None, nwaves=8, wave_base=0, wave_off=0):
    total = nrows * seg_lines
    ninst = (total + 63) // 64
    magic = (1 << 16) // seg_lines + 1
    assert all(((p * magic) >> 16) == p // seg_lines for p in range(ninst * 64)), (seg_lines, ninst)
    for i in range(ninst):
        w = wave_off + (wave_base + i) % nwaves
        lab = k.newlabel('pf')
        k.e(f's_cmp_lg_u32 s{s_wave}, {w}')
        k.e(f's_cbranch_scc1 {lab}')
        k.e(f'v_add_u32 v{vt}, {64*i}, v{lane}')
        k.e(f's_movk_i32 s{s_t}, {magic}')
        k.e(f'v_mul_lo_u32 v{vt+1}, v{vt}, s{s_t}')
        k.e(f'v_lshrrev_b32 v{vt+1}, 16, v{vt+1}')
        k.e(f'v_mul_u32_u24 v{vdst}, {seg_lines}, v{vt+1}')
        k.e(f'v_sub_u32 v{vt}, v{vt}, v{vdst}')
        k.e(f'v_mul_u32_u24 v{vt}, {stride}, v{vt}')
        k.e(f'v_add_u32 v{vt+1}, s{row0_sreg}, v{vt+1}')
        k.e(f's_mov_b32 s{s_t}, {row_bytes}')
        k.e(f'v_mul_lo_u32 v{vt+1}, v{vt+1}, s{s_t}')
        k.e(f'v_add_u32 v{vt}, v{vt}, v{vt+1}')
        if (i + 1) * 64 > total:
            k.e(f'v_cmp_gt_u32 vcc, {total - 64*i}, v{lane}')
            k.e(f's_and_saveexec_b64 s[{s_t+2}:{s_t+3}], vcc')
        k.e(f'buffer_load_dword v{vdst}, v{vt}, s[{srd}:{srd+3}], s{seg_off_sreg} offen')
        if (i + 1) * 64 > total:
            k.e(f's_mov_b64 exec, -1')
        k.label(lab)
    return ninst
```

```python
from dsl import *
import math
DIAG = True
WS_KV = 0x0
WS_G = 0x30000
WS_H = 0x400000
WS_O = 0xA00000
WS_SIZE = 0x10000000
C_SCALE = 20 ** -0.5 * math.log2(math.e)
import struct
def f32bits(x): return struct.unpack('<I', struct.pack('<f', x))[0]

KA = dict(x=0, wq=8, wk=16, wv=24, wo=32, bx=40, w1=48, w3=56, w2=64, gate=72, out=80, dbg=88, ws=96)

S_X, S_W, S_WS, S_M = 4, 8, 12, 16
S_WAVE, S_RB, S_HG, S_QH, S_HL = 20, 21, 22, 23, 24
S_T0, S_T1, S_T2, S_T3 = 26, 27, 28, 29
S_CNT, S_DK, S_DM0, S_SOFF, S_SLOT = 30, 31, 32, 33, 34
S_PTR = 40

V_TID, V_LANE = 0, 1
V_Q1, V_Q2, V_G = 4, 8, 10
V_AK1, V_AK2, V_AV, V_DMA, V_T = 11, 12, 13, 14, 15
V_O = 16
V_S = [32, 48]
V_P = 64
V_K1 = [72, 80]; V_K2 = [76, 84]
V_V = [88, 96]

def a_setup(k, wgid):
    k.e(f'v_and_b32 v{V_LANE}, 63, v0')
    k.e(f'v_lshrrev_b32 v{V_T}, 6, v0')
    k.e('s_nop 0')
    k.e(f'v_readfirstlane_b32 s{S_WAVE}, v{V_T}')
    k.e(f's_and_b32 s{S_T0}, s{wgid}, 7')
    k.e(f's_lshl_b32 s{S_T0}, s{S_T0}, 2')
    k.e(f's_lshr_b32 s{S_T1}, s{wgid}, 6')
    k.e(f's_add_u32 s{S_RB}, s{S_T0}, s{S_T1}')
    k.e(f's_lshr_b32 s{S_T1}, s{wgid}, 3')
    k.e(f's_and_b32 s{S_HG}, s{S_T1}, 7')
    k.e(f's_and_b32 s{S_QH}, s{S_WAVE}, 1')
    k.e(f's_lshr_b32 s{S_HL}, s{S_WAVE}, 1')

def qproj(k, lds_base=0, mid=None, after_c0=None):
    SLOT = 18432; XW = 8192
    vX = 32
    vW = 48
    vD = 64
    vAX = 112
    vAW = 116
    vGX = 117
    vGW = 118
    vGW2 = 119
    t0, t1, t2 = 120, 121, 122
    L = V_LANE
    k.c('--- qproj address setup')
    k.e(f'v_lshrrev_b32 v{t0}, 3, v{L}')
    k.e(f's_lshl_b32 s{S_T0}, s{S_WAVE}, 3')
    k.e(f'v_add_u32 v{t0}, s{S_T0}, v{t0}')
    k.e(f'v_lshrrev_b32 v{t1}, 1, v{t0}')
    k.e(f'v_xor_b32 v{t1}, v{t1}, v{L}')
    k.e(f'v_and_b32 v{t1}, 7, v{t1}')
    k.e(f's_lshl_b32 s{S_T0}, s{S_RB}, 6')
    k.e(f'v_add_u32 v{t0}, s{S_T0}, v{t0}')
    k.e(f's_movk_i32 s{S_T1}, 1280')
    k.e(f'v_mul_lo_u32 v{t0}, v{t0}, s{S_T1}')
    k.e(f'v_lshlrev_b32 v{t1}, 4, v{t1}')
    k.e(f'v_add_u32 v{vGX}, v{t0}, v{t1}')
    for (dst, add) in ((vGW, 0), (vGW2, 8)):
        k.e(f's_add_u32 s{S_T0}, s{S_WAVE}, {add}')
        k.e(f's_lshl_b32 s{S_T0}, s{S_T0}, 6')
        k.e(f'v_add_u32 v{t0}, s{S_T0}, v{L}')
        k.e(f's_movk_i32 s{S_T2}, 6554')
        k.e(f'v_mul_lo_u32 v{t1}, v{t0}, s{S_T2}')
        k.e(f'v_lshrrev_b32 v{t1}, 16, v{t1}')
        k.e(f'v_mul_u32_u24 v{t2}, 10, v{t1}')
        k.e(f'v_sub_u32 v{t2}, v{t0}, v{t2}')
        k.e(f'v_mul_lo_u32 v{t1}, v{t1}, s{S_T1}')
        k.e(f'v_lshlrev_b32 v{t2}, 4, v{t2}')
        k.e(f'v_add_u32 v{t1}, v{t1}, v{t2}')
        k.e(f's_mul_i32 s{S_T0}, s{S_HG}, 160')
        k.e(f'v_add_u32 v{dst}, s{S_T0}, v{t1}')
    k.e(f'v_and_b32 v{t0}, 31, v{L}')
    k.e(f'v_lshrrev_b32 v{t1}, 5, v{L}')
    k.e(f'v_lshrrev_b32 v{t2}, 1, v{t0}')
    k.e(f'v_and_b32 v{t2}, 7, v{t2}')
    k.e(f'v_xor_b32 v{t2}, v{t2}, v{t1}')
    k.e(f's_lshl_b32 s{S_T0}, s{S_QH}, 5')
    k.e(f'v_add_u32 v{t0}, s{S_T0}, v{t0}')
    k.e(f'v_lshlrev_b32 v{t0}, 7, v{t0}')
    for sp in range(4):
        k.e(f'v_xor_b32 v{t1}, {2*sp}, v{t2}')
        k.e(f'v_lshlrev_b32 v{t1}, 4, v{t1}')
        k.e(f'v_add_u32 v{vAX+sp}, v{t0}, v{t1}')
        if lds_base: k.e(f'v_add_u32 v{vAX+sp}, {lds_base}, v{vAX+sp}')
    k.e(f'v_lshrrev_b32 v{t0}, 5, v{L}')
    k.e(f'v_lshlrev_b32 v{t0}, 3, v{t0}')
    k.e(f'v_bfe_u32 v{t1}, v{L}, 2, 2')
    k.e(f'v_add_u32 v{t0}, v{t0}, v{t1}')
    k.e(f'v_mul_u32_u24 v{t0}, 160, v{t0}')
    k.e(f'v_bfe_u32 v{t1}, v{L}, 4, 1')
    k.e(f'v_lshlrev_b32 v{t1}, 5, v{t1}')
    k.e(f'v_add_u32 v{t0}, v{t0}, v{t1}')
    k.e(f'v_and_b32 v{t1}, 3, v{L}')
    k.e(f'v_lshlrev_b32 v{t1}, 3, v{t1}')
    k.e(f'v_add_u32 v{t0}, v{t0}, v{t1}')
    k.e(f's_mul_i32 s{S_T0}, s{S_HL}, 40')
    k.e(f's_add_u32 s{S_T0}, s{S_T0}, {XW + lds_base}')
    k.e(f'v_add_u32 v{vAW}, s{S_T0}, v{t0}')
    S_QS = 35
    k.e(f's_lshl_b32 s{S_QS}, s{S_WAVE}, 10')
    if lds_base: k.e(f's_add_u32 s{S_QS}, s{S_QS}, {lds_base}')

    def issue(c, three):
        sl = (c & 3) * SLOT
        S_SLOT = S_QS
        k.e(f's_add_u32 m0, s{S_SLOT}, {sl}')
        k.e(f's_movk_i32 s{S_SOFF}, {c*128}')
        k.e(f'buffer_load_dwordx4 v{vGX}, s[{S_X}:{S_X+3}], s{S_SOFF} offen lds')
        k.e(f's_add_u32 m0, s{S_SLOT}, {sl + XW}')
        k.e(f's_mov_b32 s{S_SOFF}, {c*64*1280}')
        k.e(f'buffer_load_dwordx4 v{vGW}, s[{S_W}:{S_W+3}], s{S_SOFF} offen lds')
        if three:
            k.e(f's_add_u32 m0, s{S_SLOT}, {sl + XW + 8192}')
            k.e('s_nop 0')
            k.e(f'buffer_load_dwordx4 v{vGW2}, s[{S_W}:{S_W+3}], s{S_SOFF} offen lds')

    def body(three):
        n = 3 if three else 2
        if mid is None:
            for c in range(3): issue(c, three)
        else:
            issue(0, three)
            mid(k, lambda: (issue(1, three), issue(2, three)), n)
        for c in range(10):
            rem = min(2, 9 - c)
            k.e(f's_waitcnt vmcnt({rem*n})')
            k.e('s_barrier')
            if c + 3 < 10: issue(c + 3, three)
            if c == 0 and after_c0: after_c0(k)
            sl = (c & 3) * SLOT
            for sp in range(4):
                k.e(f'ds_read_b128 {V(vX+4*sp,4)}, v{vAX+sp} offset:{sl}')
                k.e(f'ds_read_b64_tr_b16 {V(vW+4*sp,2)}, v{vAW} offset:{sl + sp*16*160}')
                k.e(f'ds_read_b64_tr_b16 {V(vW+4*sp+2,2)}, v{vAW} offset:{sl + sp*16*160 + 640}')
            for sp in range(4):
                k.e(f's_waitcnt lgkmcnt({9-3*sp})')
                src = '0' if (c == 0 and sp == 0) else V(vD, 16)
                k.e(f'v_mfma_f32_32x32x16_bf16 {V(vD,16)}, {V(vW+4*sp,4)}, {V(vX+4*sp,4)}, {src}')
    la, lb = k.newlabel('qp3'), k.newlabel('qpend')
    k.e(f's_cmp_lt_u32 s{S_WAVE}, 2')
    k.e(f's_cbranch_scc1 {la}')
    body(False)
    k.e(f's_branch {lb}')
    k.label(la)
    body(True)
    k.label(lb)
    k.e('s_nop 7'); k.e('s_nop 7')
    k.e(f's_mov_b32 s{S_T0}, {f32bits(C_SCALE):#x}')
    for i in range(12): k.e(f'v_mul_f32 v{vD+i}, s{S_T0}, v{vD+i}')
    for i in range(4): k.e(f'v_cvt_pk_bf16_f32 v{V_Q1+i}, v{vD+2*i}, v{vD+2*i+1}')
    k.e(f'v_cvt_pk_bf16_f32 v{V_Q2}, v{vD+8}, v{vD+9}')
    k.e(f'v_cvt_pk_bf16_f32 v{V_Q2+1}, v{vD+10}, v{vD+11}')
    k.e(f'v_cmp_gt_u32 vcc, 32, v{L}')
    k.e('s_nop 1')
    k.e(f'v_cndmask_b32 v{V_Q2}, 0, v{V_Q2}, vcc')
    k.e(f'v_cndmask_b32 v{V_Q2+1}, 0, v{V_Q2+1}, vcc')

def attn_addr(k, lds_base=0):
    L = V_LANE; t0, t1, t2 = V_T, V_S[0], V_S[0] + 1
    k.e(f'v_lshlrev_b32 v{V_AK1}, 4, v{L}')
    k.e(f'v_lshlrev_b32 v{V_AK2}, 3, v{L}')
    k.e(f'v_add_u32 v{V_AK2}, {1024 + lds_base}, v{V_AK2}')
    if lds_base: k.e(f'v_add_u32 v{V_AK1}, {lds_base}, v{V_AK1}')
    k.e(f'v_and_b32 v{t0}, 31, v{L}')
    k.e(f'v_subrev_u32 v{t1}, 4, v{t0}')
    k.e(f'v_cmp_lt_u32 vcc, 23, v{t0}')
    k.e('s_nop 1')
    k.e(f'v_cndmask_b32 v{t2}, v{t0}, v{t1}, vcc')
    k.e(f'v_subrev_u32 v{t1}, 12, v{t0}')
    k.e(f'v_cmp_lt_u32 vcc, 27, v{t0}')
    k.e('s_nop 1')
    k.e(f'v_cndmask_b32 v{t2}, v{t2}, v{t1}, vcc')
    k.e(f'v_lshlrev_b32 v{t2}, 4, v{t2}')
    k.e(f'v_lshrrev_b32 v{t1}, 5, v{L}')
    k.e(f'v_mul_u32_u24 v{t1}, 384, v{t1}')
    k.e(f'v_add_u32 v{t2}, v{t2}, v{t1}')
    k.e(f'v_add_u32 v{V_AV}, {1536 + lds_base}, v{t2}')
    k.e(f's_mul_i32 s{S_T0}, s{S_WAVE}, 3072')
    k.e(f'v_lshlrev_b32 v{V_DMA}, 4, v{L}')
    k.e(f'v_add_u32 v{V_DMA}, s{S_T0}, v{V_DMA}')

def kv_issue(k, m0_expr_sreg, soff_sreg, aux=''):
    k.e(f's_mov_b32 m0, s{m0_expr_sreg}')
    k.e('s_nop 0')
    for j in range(3):
        k.e(f'buffer_load_dwordx4 v{V_DMA}, s[{S_WS}:{S_WS+3}], s{soff_sreg} offen offset:{j*1024} {aux} lds')

def attn_main(k, lds_base=0, aux=''):
    CH = 24576
    O = V_O; P = V_P
    k.c('--- attention prologue')
    k.e(f's_mul_i32 s{S_DM0}, s{S_WAVE}, 3072')
    if lds_base: k.e(f's_add_u32 s{S_DM0}, s{S_DM0}, {lds_base}')
    k.e(f's_mov_b32 s{S_SOFF}, {WS_KV}')
    kv_issue(k, S_DM0, S_SOFF, aux)
    k.e(f's_add_u32 s{S_DM0}, s{S_DM0}, {CH}')
    k.e(f's_add_u32 s{S_SOFF}, s{S_SOFF}, {CH}')
    kv_issue(k, S_DM0, S_SOFF, aux)
    k.e(f's_add_u32 s{S_DM0}, s{S_DM0}, {CH}')
    k.e(f's_add_u32 s{S_SOFF}, s{S_SOFF}, {CH}')
    for i in range(16): k.e(f'v_mov_b32 v{O+i}, 0')
    for i in range(4): k.e(f'v_mov_b32 v{P+4+i}, 0')
    for i in range(4): k.e(f'v_mov_b32 v{V_V[1]+4+i}, 0')
    k.e('s_waitcnt vmcnt(3)')
    k.e('s_barrier')
    k.e(f'ds_read_b128 {V(V_K1[0],4)}, v{V_AK1}')
    k.e(f'ds_read_b64 {V(V_K2[0],2)}, v{V_AK2}')
    k.e(f'ds_read_b128 {V(V_K1[1],4)}, v{V_AK1} offset:3072')
    k.e(f'ds_read_b64 {V(V_K2[1],2)}, v{V_AK2} offset:3072')
    k.e(f'ds_read_b128 {V(V_V[0],4)}, v{V_AV}')
    k.e(f'ds_read_b128 {V(V_V[0]+4,4)}, v{V_AV} offset:768')
    k.e('s_waitcnt lgkmcnt(4)')
    k.e(f'v_mfma_f32_32x32x16_bf16 {V(V_S[0],16)}, {V(V_K1[0],4)}, {V(V_Q1,4)}, 0')
    k.e(f'v_mfma_f32_32x32x8bf16_1k {V(V_S[0],16)}, {V(V_K2[0],2)}, {V(V_Q2,2)}, {V(V_S[0],16)}')
    k.e('s_nop 7'); k.e('s_nop 7'); k.e('s_nop 3')
    k.e(f's_mov_b32 s{S_CNT}, 0')
    k.e(f's_mov_b32 s{S_SLOT}, 1')
    if DIAG: stamp(k, 9, False)
    loop = k.newlabel('attn_loop')
    k.label(loop)
    for i in range(8):
        p = i & 1
        Sc, Sn = V_S[p], V_S[1 - p]
        if i == 6:
            k.e('s_waitcnt vmcnt(0) lgkmcnt(0)')
            k.e('s_barrier')
            skip = k.newlabel('nodma')
            k.e(f's_cmp_ge_u32 s{S_CNT}, 6')
            k.e(f's_cbranch_scc1 {skip}')
            kv_issue(k, S_DM0, S_SOFF, aux)
            k.e(f's_add_u32 s{S_SOFF}, s{S_SOFF}, {CH}')
            k.e(f's_add_u32 s{S_DM0}, s{S_DM0}, {CH}')
            k.e(f's_sub_u32 s{S_T0}, s{S_DM0}, {3*CH}')
            k.e(f's_cmp_ge_u32 s{S_DM0}, {3*CH + lds_base}')
            k.e(f's_cselect_b32 s{S_DM0}, s{S_T0}, s{S_DM0}')
            k.label(skip)
            k.e(f's_cmp_eq_u32 s{S_SLOT}, 0')
            k.e(f's_movk_i32 s{S_DK}, {CH}')
            k.e(f's_cselect_b32 s{S_DK}, {-2*CH & 0xffffffff:#x}, s{S_DK}')
            k.e(f's_add_u32 s{S_SLOT}, s{S_SLOT}, 1')
            k.e(f's_cmp_eq_u32 s{S_SLOT}, 3')
            k.e(f's_cselect_b32 s{S_SLOT}, 0, s{S_SLOT}')
            k.e(f'v_add_u32 v{V_AK1}, s{S_DK}, v{V_AK1}')
            k.e(f'v_add_u32 v{V_AK2}, s{S_DK}, v{V_AK2}')
        else:
            k.e('s_waitcnt lgkmcnt(0)')
        if i == 7:
            k.e(f'v_add_u32 v{V_AV}, s{S_DK}, v{V_AV}')
        ex = lambda j: k.e(f'v_exp_f32 v{Sc+j}, v{Sc+j}')
        cv = lambda j: k.e(f'v_cvt_pk_bf16_f32 v{P+j}, v{Sc+2*j}, v{Sc+2*j+1}')
        k.e(f'v_mfma_f32_32x32x16_bf16 {V(Sn,16)}, {V(V_K1[1-p],4)}, {V(V_Q1,4)}, 0')
        ex(0); ex(1)
        ok = ((i + 2) % 8) * 3072
        k.e(f'ds_read_b128 {V(V_K1[p],4)}, v{V_AK1} offset:{ok}')
        k.e(f'ds_read_b64 {V(V_K2[p],2)}, v{V_AK2} offset:{ok}')
        ex(2); ex(3)
        k.e(f'v_mfma_f32_32x32x16_bf16 {V(O,16)}, {V(V_V[1-p]+4,4)}, {V(P+4,4)}, {V(O,16)}')
        cv(0); cv(1)
        ov = ((i + 1) % 8) * 3072
        k.e(f'ds_read_b128 {V(V_V[1-p],4)}, v{V_AV} offset:{ov}')
        k.e(f'ds_read_b128 {V(V_V[1-p]+4,4)}, v{V_AV} offset:{ov+768}')
        ex(4); ex(5); ex(6); ex(7)
        k.e(f'v_mfma_f32_32x32x8bf16_1k {V(Sn,16)}, {V(V_K2[1-p],2)}, {V(V_Q2,2)}, {V(Sn,16)}')
        cv(2); cv(3)
        ex(8); ex(9); ex(10); ex(11)
        k.e(f'v_mfma_f32_32x32x16_bf16 {V(O,16)}, {V(V_V[p],4)}, {V(P,4)}, {V(O,16)}')
        cv(4); cv(5)
        ex(12); ex(13); ex(14); ex(15)
        cv(6); cv(7)
    k.e(f's_add_u32 s{S_CNT}, s{S_CNT}, 1')
    k.e(f's_cmp_lt_u32 s{S_CNT}, 8')
    k.e(f's_cbranch_scc1 {loop}')
    if DIAG: stamp(k, 10, False)
    k.e('s_nop 1')
    k.e(f'v_mfma_f32_32x32x16_bf16 {V(O,16)}, {V(V_V[1]+4,4)}, {V(P+4,4)}, {V(O,16)}')
    k.e('s_waitcnt lgkmcnt(0)')
    k.e('s_nop 7'); k.e('s_nop 7')

def attn_store(k, aux=''):
    O = V_O; L = V_LANE
    t0, t1, t2, t3, t4 = 32, 33, 34, 35, 36
    k.e(f'v_mov_b32 v{t0}, v{O+8}')
    k.e(f'v_mov_b32 v{t1}, v{O+8}')
    k.e('s_nop 1')
    k.e(f'v_permlane32_swap_b32 v{t0}, v{t1}')
    k.e('s_nop 1')
    k.e(f'v_rcp_f32 v{t1}, v{t1}')
    k.e('s_nop 0')
    k.e(f'v_mul_f32 v{t1}, v{V_G}, v{t1}')
    for i in range(12): k.e(f'v_mul_f32 v{O+i}, v{t1}, v{O+i}')
    for i in range(6): k.e(f'v_cvt_pk_bf16_f32 v{40+i}, v{O+2*i}, v{O+2*i+1}')
    k.e(f'v_and_b32 v{t0}, 31, v{L}')
    k.e(f's_lshl_b32 s{S_T0}, s{S_RB}, 6')
    k.e(f's_lshl_b32 s{S_T1}, s{S_QH}, 5')
    k.e(f's_add_u32 s{S_T0}, s{S_T0}, s{S_T1}')
    k.e(f'v_add_u32 v{t0}, s{S_T0}, v{t0}')
    k.e(f'v_lshrrev_b32 v{t2}, 4, v{t0}')
    k.e(f's_movk_i32 s{S_T1}, {80*256}')
    k.e(f'v_mul_lo_u32 v{t2}, v{t2}, s{S_T1}')
    k.e(f'v_and_b32 v{t0}, 15, v{t0}')
    k.e(f'v_lshlrev_b32 v{t0}, 4, v{t0}')
    k.e(f'v_add_u32 v{t2}, v{t2}, v{t0}')
    k.e(f's_lshl_b32 s{S_T0}, s{S_HG}, 2')
    k.e(f's_add_u32 s{S_T0}, s{S_T0}, s{S_HL}')
    k.e(f's_mul_i32 s{S_T0}, s{S_T0}, 5')
    k.e(f'v_lshrrev_b32 v{t0}, 5, v{L}')
    k.e(f'v_add_u32 v{t0}, s{S_T0}, v{t0}')
    k.e(f's_mov_b32 s{S_T2}, {WS_O}')
    for g in range(3):
        k.e(f'v_add_u32 v{t1}, {2*g}, v{t0}')
        k.e(f'v_lshrrev_b32 v{t3}, 3, v{t1}')
        k.e(f'v_lshlrev_b32 v{t3}, 2, v{t3}')
        k.e(f'v_and_b32 v{t4}, 3, v{t1}')
        k.e(f'v_add_u32 v{t3}, v{t3}, v{t4}')
        k.e(f'v_lshlrev_b32 v{t3}, 8, v{t3}')
        k.e(f'v_bfe_u32 v{t4}, v{t1}, 2, 1')
        k.e(f'v_lshlrev_b32 v{t4}, 3, v{t4}')
        k.e(f'v_add_u32 v{t3}, v{t3}, v{t4}')
        k.e(f'v_add_u32 v{t3}, v{t3}, v{t2}')
        if g == 2:
            k.e('s_mov_b64 exec, 0xffffffff')
        k.e(f'buffer_store_dwordx2 {V(40+2*g,2)}, v{t3}, s[{S_WS}:{S_WS+3}], s{S_T2} offen {aux}')
        k.e('s_nop 1')
    k.e('s_mov_b64 exec, -1')

def kvproj(k, aux='', B=18432):
    S_GATE = 44
    XB, WB, GB = B, B + 20480, B + 46080
    L = V_LANE
    t0, t1, t2, t3 = 96, 97, 98, 99
    vAX = 100
    vAW = 104
    vD = 108
    k.c('--- kvproj: DMA')
    k.e(f's_lshr_b32 s{S_T0}, s{S_HG}, 1')
    k.e(f's_lshl_b32 s{S_T0}, s{S_T0}, 4')
    k.e(f's_lshl_b32 s{S_T3}, s{S_RB}, 6')
    k.e(f's_add_u32 s{S_T3}, s{S_T3}, s{S_T0}')
    k.e(f's_and_b32 s{S_T0}, s{S_WAVE}, 3')
    k.e(f's_lshl_b32 s{S_T1}, s{S_T0}, 2')
    k.e(f'v_lshrrev_b32 v{t0}, 4, v{L}')
    k.e(f'v_add_u32 v{t0}, s{S_T1}, v{t0}')
    k.e(f'v_xor_b32 v{t1}, v{t0}, v{L}')
    k.e(f'v_and_b32 v{t1}, 15, v{t1}')
    k.e(f'v_lshlrev_b32 v{t1}, 4, v{t1}')
    k.e(f'v_add_u32 v{t0}, s{S_T3}, v{t0}')
    k.e(f's_movk_i32 s{S_T1}, 1280')
    k.e(f'v_mul_lo_u32 v{t0}, v{t0}, s{S_T1}')
    k.e(f'v_add_u32 v{t0}, v{t0}, v{t1}')
    k.e(f's_lshr_b32 s{S_T1}, s{S_WAVE}, 2')
    k.e(f's_lshl_b32 s{S_T2}, s{S_T1}, 12')
    k.e(f's_lshl_b32 s{S_T0}, s{S_T0}, 10')
    k.e(f's_add_u32 s{S_T2}, s{S_T2}, s{S_T0}')
    k.e(f's_lshl_b32 s{S_T1}, s{S_T1}, 8')
    skipx = k.newlabel('skipx')
    for j in range(3):
        if j == 2:
            k.e(f's_cmp_ge_u32 s{S_WAVE}, 4')
            k.e(f's_cbranch_scc1 {skipx}')
        k.e(f's_add_u32 m0, s{S_T2}, {XB + j*8192}')
        k.e(f's_add_u32 s{S_SOFF}, s{S_T1}, {j*512}')
        k.e(f'buffer_load_dwordx4 v{t0}, s[{S_X}:{S_X+3}], s{S_SOFF} offen lds')
    k.label(skipx)
    k.e(f'v_lshlrev_b32 v{t1}, 4, v{L}')
    k.e(f's_lshl_b32 s{S_T0}, s{S_WAVE}, 10')
    skipw = k.newlabel('skipw')
    for j in range(4):
        if j == 3:
            k.e(f's_cmp_lg_u32 s{S_WAVE}, 0')
            k.e(f's_cbranch_scc1 {skipw}')
        k.e(f's_add_u32 m0, s{S_T0}, {WB + j*8192}')
        k.e(f's_add_u32 s{S_SOFF}, s{S_T0}, {j*8192}')
        k.e(f'buffer_load_dwordx4 v{t1}, s[{S_M}:{S_M+3}], s{S_SOFF} offen lds')
    k.label(skipw)
    skipg = k.newlabel('skipg')
    k.e(f's_sub_u32 s{S_T0}, s{S_WAVE}, 1')
    k.e(f's_cmp_ge_u32 s{S_T0}, 2')
    k.e(f's_cbranch_scc1 {skipg}')
    k.e(f's_lshl_b32 s{S_T0}, s{S_T0}, 10')
    k.e(f's_add_u32 m0, s{S_T0}, {GB}')
    k.e('s_nop 0')
    k.e(f'buffer_load_dwordx4 v{t1}, s[{S_GATE}:{S_GATE+3}], s{S_T0} offen lds')
    k.label(skipg)

def kvproj_compute(k, aux='', B=18432):
    XB, WB, GB = B, B + 20480, B + 46080
    L = V_LANE
    t0, t1, t2, t3 = 96, 97, 98, 99
    vAX = 100; vAW = 104; vD = 108
    bufX = [32, 64]; bufW = [48, 80]
    done = k.newlabel('kvdone')
    k.e(f's_cmp_ge_u32 s{S_WAVE}, 3')
    k.e(f's_cbranch_scc1 {done}')
    k.e(f's_and_b32 s{S_T0}, s{S_HG}, 1')
    k.e(f's_lshl_b32 s{S_T1}, s{S_T0}, 2')
    k.e(f's_add_u32 s{S_T1}, s{S_T1}, s{S_WAVE}')
    k.e(f's_cmp_eq_u32 s{S_T1}, 6')
    k.e(f's_cbranch_scc1 {done}')
    k.e(f'v_and_b32 v{t0}, 15, v{L}')
    k.e(f'v_lshrrev_b32 v{t1}, 4, v{L}')
    k.e(f'v_xor_b32 v{t2}, v{t0}, v{t1}')
    k.e(f'v_lshlrev_b32 v{t3}, 8, v{t0}')
    k.e(f'v_add_u32 v{t3}, {XB}, v{t3}')
    for q in range(4):
        k.e(f'v_xor_b32 v{vAX+q}, {4*q}, v{t2}')
        k.e(f'v_lshlrev_b32 v{vAX+q}, 4, v{vAX+q}')
        k.e(f'v_add_u32 v{vAX+q}, v{vAX+q}, v{t3}')
    k.e(f'v_lshlrev_b32 v{t2}, 3, v{t1}')
    k.e(f'v_bfe_u32 v{t3}, v{L}, 2, 2')
    k.e(f'v_add_u32 v{t2}, v{t2}, v{t3}')
    k.e(f'v_mul_u32_u24 v{t2}, 40, v{t2}')
    k.e(f'v_and_b32 v{t3}, 3, v{L}')
    k.e(f'v_lshlrev_b32 v{t3}, 3, v{t3}')
    k.e(f'v_add_u32 v{t2}, v{t2}, v{t3}')
    k.e(f's_lshl_b32 s{S_T0}, s{S_WAVE}, 5')
    k.e(f's_add_u32 s{S_T0}, s{S_T0}, {WB}')
    k.e(f'v_add_u32 v{vAW}, s{S_T0}, v{t2}')
    k.e(f'v_lshlrev_b32 v{t2}, 4, v{t1}')
    k.e(f'v_add_u32 v{vAW+1}, {GB}, v{t2}')

    def chain(mode):
        def reads(b):
            bi = b & 1
            for q in range(4):
                s = 4*b + q
                k.e(f'ds_read_b128 {V(bufX[bi]+4*q,4)}, v{vAX+q} offset:{b*4096}')
                if mode == 'G':
                    k.e(f'ds_read_b128 {V(bufW[bi]+4*q,4)}, v{vAW+1} offset:{s*64}')
                else:
                    k.e(f'ds_read_b64_tr_b16 {V(bufW[bi]+4*q,2)}, v{vAW} offset:{s*1280}')
                    k.e(f'ds_read_b64_tr_b16 {V(bufW[bi]+4*q+2,2)}, v{vAW} offset:{s*1280+160}')
        per = 2 if mode == 'G' else 3
        reads(0)
        for b in range(5):
            if b < 4: reads(b + 1)
            nxt = 4*per if b < 4 else 0
            for q in range(4):
                cnt = min(15, nxt + per*(3-q))
                k.e(f's_waitcnt lgkmcnt({cnt})')
                x_ = V(bufX[b&1]+4*q,4); w_ = V(bufW[b&1]+4*q,4)
                a, bb = (x_, w_) if mode == 'V' else (w_, x_)
                src = '0' if (b == 0 and q == 0) else V(vD,4)
                k.e(f'v_mfma_f32_16x16x32_bf16 {V(vD,4)}, {a}, {bb}, {src}')
        k.e('s_nop 7'); k.e('s_nop 1')

    lK0, lK1, lG, lV0, lV1 = [k.newlabel(x) for x in ('kv_k0','kv_k1','kv_g','kv_v0','kv_v1')]
    k.e(f's_cmp_eq_u32 s{S_T1}, 1'); k.e(f's_cbranch_scc1 {lK1}')
    k.e(f's_cmp_eq_u32 s{S_T1}, 2'); k.e(f's_cbranch_scc1 {lG}')
    k.e(f's_cmp_eq_u32 s{S_T1}, 4'); k.e(f's_cbranch_scc1 {lV0}')
    k.e(f's_cmp_eq_u32 s{S_T1}, 5'); k.e(f's_cbranch_scc1 {lV1}')

    def common_post():
        k.e(f's_lshr_b32 s{S_T0}, s{S_T3}, 5')
        k.e(f's_mul_i32 s{S_T0}, s{S_T0}, 3072')
        if WS_KV: k.e(f's_add_u32 s{S_T0}, s{S_T0}, {WS_KV}')
        k.e(f's_bfe_u32 s{S_T1}, s{S_T3}, 0x10004')
        k.e(f'v_cvt_pk_bf16_f32 v{vD}, v{vD}, v{vD+1}')
        k.e(f'v_cvt_pk_bf16_f32 v{vD+1}, v{vD+2}, v{vD+3}')
        k.e(f'v_and_b32 v{t0}, 15, v{L}')
        k.e(f'v_bfe_u32 v{t1}, v{L}, 4, 1')
        k.e(f'v_lshrrev_b32 v{t2}, 5, v{L}')
    chain('K'); common_post()
    k.e(f'v_lshlrev_b32 v{t1}, 5, v{t1}')
    k.e(f'v_add_u32 v{t0}, v{t0}, v{t1}')
    k.e(f's_lshl_b32 s{S_T1}, s{S_T1}, 4')
    k.e(f'v_add_u32 v{t0}, s{S_T1}, v{t0}')
    k.e(f'v_lshlrev_b32 v{t0}, 4, v{t0}')
    k.e(f'v_lshlrev_b32 v{t2}, 3, v{t2}')
    k.e(f'v_add_u32 v{t0}, v{t0}, v{t2}')
    k.e(f'buffer_store_dwordx2 {V(vD,2)}, v{t0}, s[{S_WS}:{S_WS+3}], s{S_T0} offen {aux}')
    k.e(f's_branch {done}')
    k.label(lK1)
    chain('K'); common_post()
    k.e(f'v_cmp_gt_u32 vcc, 16, v{L}')
    k.e('s_nop 1')
    k.e(f'v_cndmask_b32 v{vD}, 0, v{vD}, vcc')
    k.e(f'v_cndmask_b32 v{vD+1}, 0, v{vD+1}, vcc')
    k.e(f'v_lshlrev_b32 v{t1}, 5, v{t1}')
    k.e(f'v_add_u32 v{t0}, v{t0}, v{t1}')
    k.e(f's_lshl_b32 s{S_T1}, s{S_T1}, 4')
    k.e(f'v_add_u32 v{t0}, s{S_T1}, v{t0}')
    k.e(f'v_lshlrev_b32 v{t0}, 3, v{t0}')
    k.e('s_mov_b64 exec, 0xffffffff')
    k.e(f'buffer_store_dwordx2 {V(vD,2)}, v{t0}, s[{S_WS}:{S_WS+3}], s{S_T0} offen offset:1024 {aux}')
    k.e('s_mov_b64 exec, -1')
    k.e(f's_branch {done}')
    k.label(lG)
    chain('G')
    k.e(f's_mov_b32 s{S_T0}, {f32bits(-math.log2(math.e)):#x}')
    k.e(f'v_mul_f32 v{vD}, s{S_T0}, v{vD}')
    k.e(f'v_exp_f32 v{vD}, v{vD}')
    k.e('s_nop 0')
    k.e(f'v_add_f32 v{vD}, 1.0, v{vD}')
    k.e(f'v_rcp_f32 v{vD}, v{vD}')
    k.e(f'v_and_b32 v{t0}, 15, v{L}')
    k.e(f'v_add_u32 v{t0}, s{S_T3}, v{t0}')
    k.e(f'v_lshlrev_b32 v{t0}, 2, v{t0}')
    k.e(f's_mov_b32 s{S_T0}, {WS_G}')
    k.e('s_mov_b64 exec, 0xffff')
    k.e(f'buffer_store_dword v{vD}, v{t0}, s[{S_WS}:{S_WS+3}], s{S_T0} offen {aux}')
    k.e('s_mov_b64 exec, -1')
    k.e(f's_branch {done}')
    for dt, lab in ((0, lV0), (1, lV1)):
        k.label(lab)
        chain('V'); common_post()
        if dt == 1:
            k.e(f'v_cmp_gt_u32 vcc, 4, v{t0}')
            k.e('s_nop 1')
            k.e(f'v_cndmask_b32 v{vD}, 0, v{vD}, vcc')
            k.e(f'v_cndmask_b32 v{vD+1}, 0, v{vD+1}, vcc')
            k.e(f'v_mov_b32 v{t3}, 0x3f803f80')
            k.e(f'v_cmp_eq_u32 vcc, 4, v{t0}')
            k.e('s_nop 1')
            k.e(f'v_cndmask_b32 v{vD}, v{vD}, v{t3}, vcc')
            k.e(f'v_cndmask_b32 v{vD+1}, v{vD+1}, v{t3}, vcc')
        k.e(f'v_mul_u32_u24 v{t1}, 384, v{t1}')
        k.e(f'v_lshlrev_b32 v{t3}, 4, v{t0}')
        k.e(f'v_add_u32 v{t1}, v{t1}, v{t3}')
        k.e(f'v_lshlrev_b32 v{t2}, 3, v{t2}')
        k.e(f'v_add_u32 v{t1}, v{t1}, v{t2}')
        k.e(f's_mul_i32 s{S_T1}, s{S_T1}, 768')
        k.e(f's_add_u32 s{S_T0}, s{S_T0}, s{S_T1}')
        if dt == 1:
            k.e(f'v_cmp_gt_u32 vcc, 8, v{t0}')
            k.e('s_and_saveexec_b64 s[46:47], vcc')
        k.e(f'buffer_store_dwordx2 {V(vD,2)}, v{t1}, s[{S_WS}:{S_WS+3}], s{S_T0} offen offset:{1536 + dt*256} {aux}')
        if dt == 1: k.e('s_mov_b64 exec, -1')
        if dt == 0: k.e(f's_branch {done}')
    k.label(done)
```

```python
from roles_a import *

S_FB, S_RBK, S_CG = 21, 22, 23

class LdsQ:
    def __init__(self, k): self.k = k; self.q = []
    def issue(self, tag, text): self.k.e(text); self.q.append(tag)
    def wait(self, tags):
        idx = max([i for i, t in enumerate(self.q) if t in tags], default=-1)
        if idx < 0: return
        n = len(self.q) - 1 - idx
        self.k.e(f's_waitcnt lgkmcnt({min(n, 15)})')
        if n <= 15: self.q = self.q[idx+1:]
        else: self.q = self.q[-15:]
    def drain(self): self.k.e('s_waitcnt lgkmcnt(0)'); self.q = []

def g_setup(k, wgid):
    k.e(f'v_and_b32 v{V_LANE}, 63, v0')
    k.e(f'v_lshrrev_b32 v2, 6, v0')
    k.e('s_nop 0')
    k.e(f'v_readfirstlane_b32 s{S_WAVE}, v2')

def stagea_ids(k, wgid):
    k.e(f's_and_b32 s{S_T0}, s{wgid}, 3')
    k.e(f's_lshl_b32 s{S_T0}, s{S_T0}, 2')
    k.e(f's_bfe_u32 s{S_T1}, s{wgid}, 0x20003')
    k.e(f's_add_u32 s{S_FB}, s{S_T0}, s{S_T1}')
    k.e(f's_bfe_u32 s{S_T0}, s{wgid}, 0x10002')
    k.e(f's_lshl_b32 s{S_T0}, s{S_T0}, 3')
    k.e(f's_lshr_b32 s{S_T1}, s{wgid}, 5')
    k.e(f's_add_u32 s{S_RBK}, s{S_T0}, s{S_T1}')

EXP = set()
DIAGG = False
def stagea(k, aux='', S_W1=8, S_W3=16, prio=None, pf_first=None, pf_last=None, mid_hook=None):
    SLOT = 40960; XW = 16384
    L = V_LANE
    lload, lend = k.newlabel('sa_load'), k.newlabel('sa_end')
    k.e(f's_cmp_ge_u32 s{S_WAVE}, 4')
    k.e(f's_cbranch_scc1 {lload}')
    if prio is not None: k.e(f's_setprio {prio}')
    ACC = 32; XF = [4, 8]; WR = 12; AX = [28, 29, 2, 3]; AW = [30, 31]; t0, t1, t2 = 4, 5, 6
    k.e(f'v_lshrrev_b32 v{t0}, 5, v{L}')
    k.e(f'v_lshlrev_b32 v{t0}, 3, v{t0}')
    k.e(f'v_bfe_u32 v{t1}, v{L}, 2, 2')
    k.e(f'v_add_u32 v{t0}, v{t0}, v{t1}')
    k.e(f'v_mul_u32_u24 v{t0}, 192, v{t0}')
    k.e(f'v_bfe_u32 v{t1}, v{L}, 4, 1')
    k.e(f'v_lshlrev_b32 v{t1}, 5, v{t1}')
    k.e(f'v_add_u32 v{t0}, v{t0}, v{t1}')
    k.e(f'v_and_b32 v{t1}, 3, v{L}')
    k.e(f'v_lshlrev_b32 v{t1}, 3, v{t1}')
    k.e(f'v_add_u32 v{t0}, v{t0}, v{t1}')
    k.e(f'v_add_u32 v{AW[0]}, {XW}, v{t0}')
    k.e(f'v_add_u32 v{AW[1]}, {XW + SLOT}, v{t0}')
    k.e(f'v_and_b32 v{t0}, 31, v{L}')
    k.e(f'v_lshrrev_b32 v{t1}, 5, v{L}')
    k.e(f'v_bfe_u32 v{t2}, v{t0}, 1, 3')
    k.e(f'v_xor_b32 v{t2}, v{t2}, v{t1}')
    k.e(f's_lshl_b32 s{S_T0}, s{S_WAVE}, 5')
    k.e(f'v_add_u32 v{t0}, s{S_T0}, v{t0}')
    k.e(f'v_lshlrev_b32 v{t0}, 7, v{t0}')
    for sp in range(4):
        k.e(f'v_xor_b32 v{t1}, {2*sp}, v{t2}')
        k.e(f'v_lshlrev_b32 v{t1}, 4, v{t1}')
        k.e(f'v_add_u32 v{AX[sp]}, v{t0}, v{t1}')
    lq = LdsQ(k)
    NQ = 240
    def wread(q):
        kap, T = divmod(q, 6); c, sp = divmod(kap, 4); ft, m = divmod(T, 2)
        base = AW[c & 1]; off = m * 12288 + sp * 16 * 192 + ft * 64
        r = WR + 4 * (q & 3)
        if 'noread' in EXP: return
        lq.issue(('w', q), f'ds_read_b64_tr_b16 {V(r,2)}, v{base} offset:{off}')
        lq.issue(('w', q), f'ds_read_b64_tr_b16 {V(r+2,2)}, v{base} offset:{off + 768}')
    def xread(kap):
        c, sp = divmod(kap, 4)
        lq.issue(('x', kap), f'ds_read_b128 {V(XF[kap&1],4)}, v{AX[sp]} offset:{(c&1)*SLOT}')
    k.e('s_barrier')
    xread(0)
    for q in range(3): wread(q)
    for q in range(NQ):
        kap, T = divmod(q, 6); c, sp = divmod(kap, 4)
        if T == 2 and not (sp == 3):
            xread(kap + 1)
        if T == 3 and sp == 3 and c < 9:
            lq.drain()
            k.e('s_barrier')
            xread(kap + 1)
        if q + 3 < NQ: wread(q + 3)
        lq.wait([('w', q), ('x', kap)])
        a = ACC + 16 * T
        src = '0' if kap == 0 else V(a, 16)
        if 'nomfma' not in EXP: k.e(f'v_mfma_f32_32x32x16_bf16 {V(a,16)}, {V(WR + 4*(q&3),4)}, {V(XF[kap&1],4)}, {src}')
    if DIAGG: stamp(k, 3)
    if prio is not None: k.e('s_setprio 0')
    k.e('s_nop 7'); k.e('s_nop 7')
    t0, t1 = 12, 13
    k.e(f'v_and_b32 v{L}, 63, v0')
    k.e(f's_mov_b32 s{S_T0}, {f32bits(-math.log2(math.e)):#x}')
    k.e(f'v_and_b32 v{t0}, 31, v{L}')
    k.e(f's_lshl_b32 s{S_T1}, s{S_RBK}, 7')
    k.e(f's_lshl_b32 s{S_T2}, s{S_WAVE}, 5')
    k.e(f's_add_u32 s{S_T1}, s{S_T1}, s{S_T2}')
    k.e(f'v_add_u32 v{t0}, s{S_T1}, v{t0}')
    k.e(f'v_lshrrev_b32 v{t1}, 4, v{t0}')
    k.e(f's_mov_b32 s{S_T2}, 49152')
    k.e(f'v_mul_lo_u32 v{t1}, v{t1}, s{S_T2}')
    k.e(f'v_and_b32 v{t0}, 15, v{t0}')
    k.e(f'v_lshlrev_b32 v{t0}, 4, v{t0}')
    k.e(f'v_add_u32 v{t1}, v{t1}, v{t0}')
    k.e(f'v_lshrrev_b32 v{t0}, 5, v{L}')
    k.e(f'v_lshlrev_b32 v{t0}, 8, v{t0}')
    k.e(f'v_add_u32 v{AX[0]}, v{t1}, v{t0}')
    k.e(f's_mul_i32 s{S_T1}, s{S_FB}, 3072')
    k.e(f's_add_u32 s{S_T1}, s{S_T1}, {WS_H}')
    tmp = list(range(4, 12))
    for ft in range(3):
        G = ACC + 32 * ft; U = G + 16
        for base in range(0, 16, 8):
            rs = list(range(base, base + 8))
            for j, r in enumerate(rs): k.e(f'v_mul_f32 v{tmp[j]}, s{S_T0}, v{G+r}')
            for j, r in enumerate(rs): k.e(f'v_exp_f32 v{tmp[j]}, v{tmp[j]}')
            for j, r in enumerate(rs): k.e(f'v_mul_f32 v{G+r}, v{G+r}, v{U+r}')
            for j, r in enumerate(rs): k.e(f'v_add_f32 v{tmp[j]}, 1.0, v{tmp[j]}')
            for j, r in enumerate(rs): k.e(f'v_rcp_f32 v{tmp[j]}, v{tmp[j]}')
            k.e('s_nop 0')
            for j, r in enumerate(rs): k.e(f'v_mul_f32 v{G+r}, v{G+r}, v{tmp[j]}')
        P = U
        k.e(f'v_cvt_pk_bf16_f32 v{P+0}, v{G+0}, v{G+1}')
        k.e(f'v_cvt_pk_bf16_f32 v{P+1}, v{G+2}, v{G+3}')
        k.e(f'v_cvt_pk_bf16_f32 v{P+2}, v{G+8}, v{G+9}')
        k.e(f'v_cvt_pk_bf16_f32 v{P+3}, v{G+10}, v{G+11}')
        k.e(f'v_cvt_pk_bf16_f32 v{P+4}, v{G+4}, v{G+5}')
        k.e(f'v_cvt_pk_bf16_f32 v{P+5}, v{G+6}, v{G+7}')
        k.e(f'v_cvt_pk_bf16_f32 v{P+6}, v{G+12}, v{G+13}')
        k.e(f'v_cvt_pk_bf16_f32 v{P+7}, v{G+14}, v{G+15}')
        k.e(f'buffer_store_dwordx4 {V(P,4)}, v{AX[0]}, s[{S_WS}:{S_WS+3}], s{S_T1} offen offset:{ft*1024} {aux}')
        k.e(f'buffer_store_dwordx4 {V(P+4,4)}, v{AX[0]}, s[{S_WS}:{S_WS+3}], s{S_T1} offen offset:{ft*1024 + 512} {aux}')
    k.e('s_waitcnt vmcnt(0)')
    k.e(f's_branch {lend}')
    k.label(lload)
    t0, t1, t2 = 2, 3, 12
    GX = [4, 5, 6, 7]; GW = [14, 15, 16, 17, 18, 19]
    k.e(f's_sub_u32 s{S_HL}, s{S_WAVE}, 4')
    lw = S_HL
    k.e(f's_movk_i32 s{S_T2}, 1280')
    for j in range(4):
        k.e(f's_lshl_b32 s{S_T0}, s{lw}, 2')
        k.e(f's_add_u32 s{S_T0}, s{S_T0}, {j}')
        k.e(f's_lshl_b32 s{S_T0}, s{S_T0}, 3')
        k.e(f'v_lshrrev_b32 v{t0}, 3, v{L}')
        k.e(f'v_add_u32 v{t0}, s{S_T0}, v{t0}')
        k.e(f'v_lshrrev_b32 v{t1}, 1, v{t0}')
        k.e(f'v_xor_b32 v{t1}, v{t1}, v{L}')
        k.e(f'v_and_b32 v{t1}, 7, v{t1}')
        k.e(f'v_lshlrev_b32 v{t1}, 4, v{t1}')
        k.e(f's_lshl_b32 s{S_T1}, s{S_RBK}, 7')
        k.e(f'v_add_u32 v{t0}, s{S_T1}, v{t0}')
        k.e(f'v_mul_lo_u32 v{t0}, v{t0}, s{S_T2}')
        k.e(f'v_add_u32 v{GX[j]}, v{t0}, v{t1}')
    k.e(f's_movk_i32 s{S_T2}, 3072')
    k.e(f's_movk_i32 s{S_T3}, 5462')
    for j in range(6):
        k.e(f's_and_b32 s{S_T0}, s{lw}, 1')
        k.e(f's_mul_i32 s{S_T0}, s{S_T0}, 6')
        k.e(f's_add_u32 s{S_T0}, s{S_T0}, {j}')
        k.e(f's_lshl_b32 s{S_T0}, s{S_T0}, 6')
        k.e(f'v_add_u32 v{t0}, s{S_T0}, v{L}')
        k.e(f'v_mul_lo_u32 v{t1}, v{t0}, s{S_T3}')
        k.e(f'v_lshrrev_b32 v{t1}, 16, v{t1}')
        k.e(f'v_mul_u32_u24 v{t2}, 12, v{t1}')
        k.e(f'v_sub_u32 v{t2}, v{t0}, v{t2}')
        k.e(f'v_mul_lo_u32 v{t1}, v{t1}, s{S_T2}')
        k.e(f'v_lshlrev_b32 v{t2}, 4, v{t2}')
        k.e(f'v_add_u32 v{t1}, v{t1}, v{t2}')
        k.e(f's_mul_i32 s{S_T0}, s{S_FB}, 192')
        k.e(f'v_add_u32 v{GW[j]}, s{S_T0}, v{t1}')
    k.e(f's_cmp_ge_u32 s{lw}, 2')
    for i in range(3): k.e(f's_cselect_b32 s{48+i}, s{S_W3+i}, s{S_W1+i}')
    k.e(f's_mov_b32 s51, 0x00020000')
    k.e(f's_lshl_b32 s{S_DK}, s{lw}, 12')
    k.e(f's_mul_i32 s{S_DM0}, s{lw}, 6144')
    k.e(f's_add_u32 s{S_DM0}, s{S_DM0}, {XW}')
    def issue(c):
        if 'nodma' in EXP: return
        sl = (c & 1) * SLOT
        k.e(f's_movk_i32 s{S_SOFF}, {c*128}')
        for j in range(4):
            k.e(f's_add_u32 m0, s{S_DK}, {sl + j*1024}')
            k.e('s_nop 0')
            k.e(f'buffer_load_dwordx4 v{GX[j]}, s[{S_X}:{S_X+3}], s{S_SOFF} offen lds')
        k.e(f's_mov_b32 s{S_SOFF}, {c*64*3072}')
        for j in range(6):
            k.e(f's_add_u32 m0, s{S_DM0}, {sl + j*1024}')
            k.e('s_nop 0')
            k.e(f'buffer_load_dwordx4 v{GW[j]}, s[48:51], s{S_SOFF} offen lds')
    fr = [x for x in EXP if x.startswith('free')]
    if fr:
        D = int(fr[0][4:])
        for c in range(10):
            issue(c)
            if c >= D: k.e(f's_waitcnt vmcnt({min(63,10*D)})')
        k.e('s_waitcnt vmcnt(0)')
        stamp(k, 4)
        for c in range(10): k.e('s_barrier')
        k.e(f's_branch {lend}')
    issue(0); issue(1)
    npf = pf_first(k) if pf_first else 0
    k.e(f's_waitcnt vmcnt({10 + npf})')
    k.e('s_barrier')
    for c in range(9):
        k.e('s_waitcnt vmcnt(0)')
        k.e('s_barrier')
        if c + 2 < 10: issue(c + 2)
        if c == 3 and mid_hook: mid_hook(k)
    if pf_last: pf_last(k)
    k.label(lend)

def final_gemm(k, wgid_expr_done=True, aux_ld='', S_W2=8, S_WO=16, S_OUT=44, phases=('w2','wo')):
    SLOT = 20480
    L = V_LANE
    ACC = 32
    BR = 72
    WF = 104
    GW = [4, 5, 6]; AB = 7; AWR = 8; G1 = [10, 11]; t0, t1, t2 = 2, 3, 12
    S_RP, S_KQ = 24, 25
    k.e(f's_and_b32 s{S_RP}, s{S_WAVE}, 1')
    k.e(f's_lshr_b32 s{S_KQ}, s{S_WAVE}, 1')
    k.e(f's_movk_i32 s{S_T2}, 1280')
    k.e(f's_movk_i32 s{S_T3}, 6554')
    for j in range(3):
        k.e(f's_add_u32 s{S_T0}, s{S_WAVE}, {8*j}')
        k.e(f's_lshl_b32 s{S_T0}, s{S_T0}, 6')
        k.e(f'v_add_u32 v{t0}, s{S_T0}, v{L}')
        k.e(f'v_mul_lo_u32 v{t1}, v{t0}, s{S_T3}')
        k.e(f'v_lshrrev_b32 v{t1}, 16, v{t1}')
        k.e(f'v_mul_u32_u24 v{t2}, 10, v{t1}')
        k.e(f'v_sub_u32 v{t2}, v{t0}, v{t2}')
        k.e(f'v_mul_lo_u32 v{t1}, v{t1}, s{S_T2}')
        k.e(f'v_lshlrev_b32 v{t2}, 4, v{t2}')
        k.e(f'v_add_u32 v{t1}, v{t1}, v{t2}')
        k.e(f's_mul_i32 s{S_T0}, s{S_CG}, 160')
        k.e(f'v_add_u32 v{GW[j]}, s{S_T0}, v{t1}')
    k.e(f'v_lshlrev_b32 v{AB}, 4, v{L}')
    k.e(f'v_lshrrev_b32 v{t0}, 4, v{L}')
    k.e(f'v_lshlrev_b32 v{t0}, 2, v{t0}')
    k.e(f'v_bfe_u32 v{t1}, v{L}, 2, 2')
    k.e(f'v_add_u32 v{t0}, v{t0}, v{t1}')
    k.e(f's_lshl_b32 s{S_T0}, s{S_KQ}, 5')
    k.e(f'v_add_u32 v{t0}, s{S_T0}, v{t0}')
    k.e(f'v_mul_u32_u24 v{t0}, 160, v{t0}')
    k.e(f'v_and_b32 v{t1}, 3, v{L}')
    k.e(f'v_mul_u32_u24 v{t1}, 40, v{t1}')
    k.e(f'v_add_u32 v{AWR}, v{t0}, v{t1}')
    S_BH, S_BO = 36, 37
    k.e(f's_lshl_b32 s{S_T0}, s{S_RB}, 2')
    k.e(f's_lshl_b32 s{S_T1}, s{S_RP}, 1')
    k.e(f's_add_u32 s{S_T0}, s{S_T0}, s{S_T1}')
    k.e(f's_lshl_b32 s{S_T1}, s{S_KQ}, 10')
    k.e(f's_mul_i32 s{S_BH}, s{S_T0}, 49152')
    k.e(f's_add_u32 s{S_BH}, s{S_BH}, s{S_T1}')
    k.e(f's_add_u32 s{S_BH}, s{S_BH}, {WS_H}')
    k.e(f's_mul_i32 s{S_BO}, s{S_T0}, 20480')
    k.e(f's_add_u32 s{S_BO}, s{S_BO}, s{S_T1}')
    k.e(f's_add_u32 s{S_BO}, s{S_BO}, {WS_O}')
    k.e(f's_lshl_b32 s{S_T0}, s{S_T0}, 4')
    k.e(f'v_and_b32 v{t0}, 15, v{L}')
    k.e(f'v_add_u32 v{t0}, s{S_T0}, v{t0}')
    k.e(f'v_lshlrev_b32 v{t0}, 2, v{t0}')
    k.e(f's_mov_b32 s{S_T1}, {WS_G}')
    k.e(f'buffer_load_dword v{G1[0]}, v{t0}, s[{S_WS}:{S_WS+3}], s{S_T1} offen {aux_ld}')
    k.e(f'buffer_load_dword v{G1[1]}, v{t0}, s[{S_WS}:{S_WS+3}], s{S_T1} offen offset:64 {aux_ld}')
    k.e(f's_lshl_b32 s{S_SLOT}, s{S_WAVE}, 10')
    NSS = 17
    def body(three):
        n = (3 if three else 2) + 2
        def issue(ss):
            sl = (ss & 3) * SLOT
            w2 = ss < 12
            sw = S_W2 if w2 else S_WO
            k.e(f's_mov_b32 s{S_SOFF}, {(ss if w2 else ss-12)*128*1280}')
            for j in range(3 if three else 2):
                k.e(f's_add_u32 m0, s{S_SLOT}, {sl + j*8192}')
                k.e('s_nop 0')
                k.e(f'buffer_load_dwordx4 v{GW[j]}, s[{sw}:{sw+3}], s{S_SOFF} offen lds')
            stride = 49152 if w2 else 20480
            for rt in range(2):
                k.e(f's_add_u32 s{S_SOFF}, s{S_BH if w2 else S_BO}, {(ss if w2 else ss-12)*4096 + rt*stride}')
                k.e(f'buffer_load_dwordx4 {V(BR + 8*(ss&3) + 4*rt, 4)}, v{AB}, s[{S_WS}:{S_WS+3}], s{S_SOFF} offen {aux_ld}')
        for ss in range(3): issue(ss)
        for ss in range(NSS):
            rem = min(2, NSS - 1 - ss)
            k.e(f's_waitcnt vmcnt({rem*n})')
            k.e('s_barrier')
            if ss + 3 < NSS: issue(ss + 3)
            sl = (ss & 3) * SLOT
            base_off = sl if sl < 40960 else sl - 40960
            areg = AWR if sl < 40960 else AWR + 1
            for t in range(5):
                k.e(f'ds_read_b64_tr_b16 {V(WF+4*t,2)}, v{areg} offset:{base_off + 8*t}')
                k.e(f'ds_read_b64_tr_b16 {V(WF+4*t+2,2)}, v{areg} offset:{base_off + 8*t + 16*160}')
            if ss == 12:
                k.e('s_nop 7')
                for rt in range(2):
                    for i in range(20): k.e(f'v_mul_f32 v{ACC+20*rt+i}, v{G1[rt]}, v{ACC+20*rt+i}')
            for t in range(5):
                k.e(f's_waitcnt lgkmcnt({2*(4-t)})')
                for rt in range(2):
                    a = ACC + 20*rt + 4*t
                    src = '0' if ss == 0 else V(a, 4)
                    k.e(f'v_mfma_f32_16x16x32_bf16 {V(a,4)}, {V(WF+4*t,4)}, {V(BR + 8*(ss&3) + 4*rt,4)}, {src}')
    k.e(f'v_add_u32 v{AWR+1}, 40960, v{AWR}')
    k.e('s_waitcnt vmcnt(0)')
    for rt in range(2): k.e(f'v_sub_f32 v{G1[rt]}, 1.0, v{G1[rt]}')
    la, lb = k.newlabel('fg3'), k.newlabel('fgend')
    k.e(f's_cmp_lt_u32 s{S_WAVE}, 4')
    k.e(f's_cbranch_scc1 {la}')
    body(False)
    k.e(f's_branch {lb}')
    k.label(la)
    body(True)
    k.label(lb)
    k.e('s_nop 7'); k.e('s_nop 1')
    k.e('s_barrier')
    OWN = [0, 9216, 15360, 24576]; NT = [3, 2, 3, 2]; TS = [[0,1,2],[3,4],[0,1,2],[3,4]]
    k.e(f'v_lshlrev_b32 v{t0}, 4, v{L}')
    k.e(f's_mul_i32 s{S_T0}, s{S_RP}, 30720')
    k.e(f'v_add_u32 v{t0}, s{S_T0}, v{t0}')
    labs = [k.newlabel(f'red{q}') for q in range(4)]
    lred = k.newlabel('redend')
    for q in range(1, 4):
        k.e(f's_cmp_eq_u32 s{S_KQ}, {q}'); k.e(f's_cbranch_scc1 {labs[q]}')
    for q in range(4):
        k.label(labs[q])
        for o in range(4):
            if o == q: continue
            si = (q - o - 1) % 4
            rt = o >> 1
            for ti, t in enumerate(TS[o]):
                off = OWN[o] + (si * NT[o] + ti) * 1024
                k.e(f'ds_write_b128 v{t0}, {V(ACC+20*rt+4*t,4)} offset:{off}')
        k.e('s_waitcnt lgkmcnt(0)')
        k.e('s_barrier')
        o = q; rt = o >> 1
        R = 72
        idx = 0
        for si in range(3):
            for ti, t in enumerate(TS[o]):
                off = OWN[o] + (si * NT[o] + ti) * 1024
                k.e(f'ds_read_b128 {V(R+4*idx,4)}, v{t0} offset:{off}')
                idx += 1
        k.e('s_waitcnt lgkmcnt(0)')
        idx = 0
        for si in range(3):
            for ti, t in enumerate(TS[o]):
                for i in range(4):
                    k.e(f'v_add_f32 v{ACC+20*rt+4*t+i}, v{ACC+20*rt+4*t+i}, v{R+4*idx+i}')
                idx += 1
        P = 72
        for ti, t in enumerate(TS[o]):
            a = ACC + 20*rt + 4*t
            k.e(f'v_cvt_pk_bf16_f32 v{P+2*ti}, v{a}, v{a+1}')
            k.e(f'v_cvt_pk_bf16_f32 v{P+2*ti+1}, v{a+2}, v{a+3}')
        k.e(f's_lshl_b32 s{S_T0}, s{S_RB}, 6')
        k.e(f's_lshl_b32 s{S_T1}, s{S_RP}, 5')
        k.e(f's_add_u32 s{S_T0}, s{S_T0}, s{S_T1}')
        k.e(f's_add_u32 s{S_T0}, s{S_T0}, {rt*16}')
        k.e(f'v_and_b32 v{t1}, 15, v{L}')
        k.e(f'v_add_u32 v{t1}, s{S_T0}, v{t1}')
        k.e(f's_movk_i32 s{S_T1}, 1280')
        k.e(f'v_mul_lo_u32 v{t1}, v{t1}, s{S_T1}')
        k.e(f'v_lshrrev_b32 v{t2}, 4, v{L}')
        k.e(f'v_mul_u32_u24 v{t2}, 40, v{t2}')
        k.e(f'v_add_u32 v{t1}, v{t1}, v{t2}')
        k.e(f's_mul_i32 s{S_T0}, s{S_CG}, 160')
        k.e(f's_add_u32 s{S_T0}, s{S_T0}, {8*TS[o][0]}')
        if NT[o] == 3:
            k.e(f'buffer_store_dwordx4 {V(P,4)}, v{t1}, s[{S_OUT}:{S_OUT+3}], s{S_T0} offen')
            k.e(f'buffer_store_dwordx2 {V(P+4,2)}, v{t1}, s[{S_OUT}:{S_OUT+3}], s{S_T0} offen offset:16')
        else:
            k.e(f'buffer_store_dwordx4 {V(P,4)}, v{t1}, s[{S_OUT}:{S_OUT+3}], s{S_T0} offen')
        if q < 3: k.e(f's_branch {lred}')
    k.label(lred)
```

```python
from roles_g import *
from prefetch import *
import roles_a, roles_g

S_DBG = 52
CNT_KV, CNT_H, CNT_O = 0, 64, 128
SPIN_MAX = 200000

class VmQ:
    def __init__(self, k): self.k = k; self.q = []
    def issue(self, tag, text): self.k.e(text); self.q.append(tag)
    def wait(self, tags):
        idx = max([i for i, t in enumerate(self.q) if t in tags], default=-1)
        if idx < 0: return
        n = len(self.q) - 1 - idx
        assert n <= 63
        self.k.e(f's_waitcnt vmcnt({n})')
        self.q = self.q[idx+1:]
    def drain(self): self.k.e('s_waitcnt vmcnt(0)'); self.q = []

WS_FL = 0x3F0000
FL_KV, FL_H, FL_O = WS_FL, WS_FL + 0x1000, WS_FL + 0x2000
S_NONCE = 57
def nonce_publish(k, vt):
    lab = k.newlabel('np')
    k.e(f's_or_b32 s{S_T0}, s2, s{S_WAVE}')
    k.e(f's_cmp_lg_u32 s{S_T0}, 0')
    k.e(f's_cbranch_scc1 {lab}')
    k.e(f's_memrealtime s[58:59]')
    k.e('s_waitcnt lgkmcnt(0)')
    k.e('s_or_b32 s58, s58, 1')
    k.e(f'v_mov_b32 v{vt}, 0'); k.e(f'v_mov_b32 v{vt+1}, s58')
    k.e('s_mov_b64 exec, 1')
    k.e(f'global_store_dword v{vt}, v{vt+1}, s[{S_DBG}:{S_DBG+1}] sc1')
    k.e('s_mov_b64 exec, -1')
    k.label(lab)

def nonce_get(k, vt):
    loop, done = k.newlabel('ng'), k.newlabel('ngd')
    k.e(f'v_mov_b32 v{vt}, 0')
    k.e(f's_mov_b32 s{S_T3}, 0')
    k.label(loop)
    k.e(f'global_load_dword v{vt+1}, v{vt}, s[{S_DBG}:{S_DBG+1}] sc1')
    k.e('s_waitcnt vmcnt(0)')
    k.e(f'v_readfirstlane_b32 s{S_NONCE}, v{vt+1}')
    k.e(f's_add_u32 s{S_T3}, s{S_T3}, 1')
    k.e(f's_cmp_ge_u32 s{S_T3}, {SPIN_MAX}'); k.e(f's_cbranch_scc1 {done}')
    k.e(f's_cmp_eq_u32 s{S_NONCE}, 0'); k.e(f's_cbranch_scc1 {loop}')
    k.label(done)

def flag_set(k, off_sreg, vt):
    k.e(f'v_mov_b32 v{vt}, 0'); k.e(f'v_mov_b32 v{vt+1}, s{S_NONCE}')
    k.e('s_mov_b64 exec, 1')
    k.e(f'buffer_store_dword v{vt+1}, v{vt}, s[{S_WS}:{S_WS+3}], s{off_sreg} offen sc1')
    k.e('s_mov_b64 exec, -1')

SW = 7
def flag_wait(k, items, vt, wave=SW):
    lab, loop = k.newlabel('fw_done'), k.newlabel('fw_loop')
    L = V_LANE
    k.e(f's_cmp_lg_u32 s{S_WAVE}, {wave}')
    k.e(f's_cbranch_scc1 {lab}')
    k.e(f'v_lshlrev_b32 v{vt}, 4, v{L}')
    k.e(f's_mov_b32 s{S_T3}, 0')
    k.label(loop)
    r = vt + 2
    regs = []
    for it in items:
        if it[0] == 'kv':
            k.e(f's_mov_b32 s{S_T2}, {FL_KV}')
            r = (r + 1) & ~1
            k.e(f'buffer_load_dwordx4 {V(r,4)}, v{vt}, s[{S_WS}:{S_WS+3}], s{S_T2} offen sc1')
            k.e(f'buffer_load_dwordx4 {V(r+4,4)}, v{vt}, s[{S_WS}:{S_WS+3}], s{S_T2} offen offset:1024 sc1')
            regs += [(r, None), (r+2, None), (r+4, None), (r+6, None)]
            r += 8
        else:
            _, off, n, stride = it
            k.e(f'v_mul_u32_u24 v{vt+1}, {stride}, v{L}')
            k.e(f'v_cmp_gt_u32 vcc, {n}, v{L}')
            k.e(f'v_mov_b32 v{r}, s{S_NONCE}')
            k.e(f's_and_saveexec_b64 s[58:59], vcc')
            k.e(f'buffer_load_dword v{r}, v{vt+1}, s[{S_WS}:{S_WS+3}], s{off} offen sc1')
            k.e('s_mov_b64 exec, -1')
            regs.append((r, None)); r += 1
    k.e('s_waitcnt vmcnt(0)')
    k.e(f's_add_u32 s{S_T3}, s{S_T3}, 1')
    k.e(f's_cmp_ge_u32 s{S_T3}, {SPIN_MAX}'); k.e(f's_cbranch_scc1 {lab}')
    for (rr, _) in regs:
        k.e(f'v_cmp_ne_u32 vcc, s{S_NONCE}, v{rr}')
        k.e(f's_cbranch_vccnz {loop}')
    k.label(lab)
    k.e('s_barrier')

def attn_store2(k, aux=''):
    O = V_O; L = V_LANE
    t0, t1, t2, t3, t4 = 32, 33, 34, 35, 36
    RS = 176
    k.e(f'v_mov_b32 v{t0}, v{O+8}')
    k.e(f'v_mov_b32 v{t1}, v{O+8}')
    k.e('s_nop 1')
    k.e(f'v_permlane32_swap_b32 v{t0}, v{t1}')
    k.e('s_nop 1')
    k.e(f'v_rcp_f32 v{t1}, v{t1}')
    k.e('s_nop 0')
    k.e(f'v_mul_f32 v{t1}, v{V_G}, v{t1}')
    for i in range(12): k.e(f'v_mul_f32 v{O+i}, v{t1}, v{O+i}')
    for i in range(6): k.e(f'v_cvt_pk_bf16_f32 v{40+i}, v{O+2*i}, v{O+2*i+1}')
    k.e(f'v_and_b32 v{t0}, 31, v{L}')
    k.e(f's_lshl_b32 s{S_T0}, s{S_QH}, 5')
    k.e(f'v_add_u32 v{t0}, s{S_T0}, v{t0}')
    k.e(f'v_mul_u32_u24 v{t0}, {RS}, v{t0}')
    k.e(f'v_lshrrev_b32 v{t2}, 5, v{L}')
    k.e(f'v_lshlrev_b32 v{t2}, 3, v{t2}')
    k.e(f'v_add_u32 v{t0}, v{t0}, v{t2}')
    k.e(f's_mul_i32 s{S_T0}, s{S_HL}, 40')
    k.e(f'v_add_u32 v{t0}, s{S_T0}, v{t0}')
    k.e(f'ds_write_b64 v{t0}, {V(40,2)}')
    k.e(f'ds_write_b64 v{t0}, {V(42,2)} offset:16')
    k.e('s_mov_b64 exec, 0xffffffff')
    k.e(f'ds_write_b64 v{t0}, {V(44,2)} offset:32')
    k.e('s_mov_b64 exec, -1')
    k.e('s_waitcnt lgkmcnt(0)')
    k.e('s_barrier')
    skip = k.newlabel('ost')
    for j in range(2):
        if j == 1:
            k.e(f's_cmp_ge_u32 s{S_WAVE}, 2')
            k.e(f's_cbranch_scc1 {skip}')
        k.e(f's_add_u32 s{S_T0}, s{S_WAVE}, {8*j}')
        k.e(f's_lshl_b32 s{S_T0}, s{S_T0}, 2')
        k.e(f'v_lshrrev_b32 v{t0}, 4, v{L}')
        k.e(f'v_add_u32 v{t0}, s{S_T0}, v{t0}')
        k.e(f'v_mul_u32_u24 v{t1}, 26, v{t0}')
        k.e(f'v_lshrrev_b32 v{t1}, 8, v{t1}')
        k.e(f'v_mul_u32_u24 v{t2}, 10, v{t1}')
        k.e(f'v_sub_u32 v{t2}, v{t0}, v{t2}')
        k.e(f'v_and_b32 v{t3}, 15, v{L}')
        k.e(f'v_lshlrev_b32 v{t4}, 4, v{t1}')
        k.e(f'v_add_u32 v{t4}, v{t4}, v{t3}')
        k.e(f'v_mul_u32_u24 v{t4}, {RS}, v{t4}')
        k.e(f'v_lshlrev_b32 v{t0}, 4, v{t2}')
        k.e(f'v_add_u32 v{t4}, v{t4}, v{t0}')
        k.e(f'ds_read_b128 {V(48+4*j,4)}, v{t4}')
        k.e(f's_movk_i32 s{S_T1}, 20480')
        k.e(f'v_mul_lo_u32 v{t1}, v{t1}, s{S_T1}')
        k.e(f'v_lshlrev_b32 v{t2}, 8, v{t2}')
        k.e(f'v_add_u32 v{t1}, v{t1}, v{t2}')
        k.e(f'v_lshlrev_b32 v{t3}, 4, v{t3}')
        k.e(f'v_add_u32 v{t1}, v{t1}, v{t3}')
        k.e(f's_mul_i32 s{S_T0}, s{S_RB}, {4*20480}')
        k.e(f's_mul_i32 s{S_T1}, s{S_HG}, 2560')
        k.e(f's_add_u32 s{S_T0}, s{S_T0}, s{S_T1}')
        k.e(f's_add_u32 s{S_T0}, s{S_T0}, {WS_O}')
        k.e('s_waitcnt lgkmcnt(0)')
        k.e(f'buffer_store_dwordx4 {V(48+4*j,4)}, v{t1}, s[{S_WS}:{S_WS+3}], s{S_T0} offen {aux}')
    k.label(skip)
assert all((g*26)>>8 == g//10 for g in range(40))

def final2(k, fused, S_W2=8, S_WO=16, S_OUT=44):
    aux_ld = 'sc1' if fused else ''
    SLOT = 20480
    L = V_LANE
    ACC = 32; BR = 72; BX = 16; WF = 104
    GW = [4, 5, 6]; AB = 7; AWR = 8; G1 = [10, 11]; t0, t1, t2, t3 = 2, 3, 12, 13
    GWO = [24, 25, 26]
    S_RP, S_KQ = 24, 25
    S_BH, S_BO = 36, 37
    k.e(f'v_and_b32 v{L}, 63, v0')
    k.e(f's_and_b32 s{S_RP}, s{S_WAVE}, 1')
    k.e(f's_lshr_b32 s{S_KQ}, s{S_WAVE}, 1')
    k.e(f's_movk_i32 s{S_T2}, 1280')
    k.e(f's_movk_i32 s{S_T3}, 6554')
    for j in range(3):
        k.e(f's_add_u32 s{S_T0}, s{S_WAVE}, {8*j}')
        k.e(f's_lshl_b32 s{S_T0}, s{S_T0}, 6')
        k.e(f'v_add_u32 v{t0}, s{S_T0}, v{L}')
        k.e(f'v_mul_lo_u32 v{t1}, v{t0}, s{S_T3}')
        k.e(f'v_lshrrev_b32 v{t1}, 16, v{t1}')
        k.e(f'v_mul_u32_u24 v{t2}, 10, v{t1}')
        k.e(f'v_sub_u32 v{t2}, v{t0}, v{t2}')
        k.e(f'v_lshlrev_b32 v{t2}, 4, v{t2}')
        k.e(f's_mul_i32 s{S_T0}, s{S_CG}, 160')
        k.e(f'v_add_u32 v{t2}, s{S_T0}, v{t2}')
        k.e(f'v_and_b32 v{t0}, 0xc, v{t1}')
        k.e(f'v_lshlrev_b32 v{t0}, 1, v{t0}')
        k.e(f'v_and_b32 v{t3}, 0x10, v{t1}')
        k.e(f'v_lshrrev_b32 v{t3}, 2, v{t3}')
        k.e(f'v_or_b32 v{t0}, v{t0}, v{t3}')
        k.e(f'v_and_b32 v{t3}, 0xffffffe3, v{t1}')
        k.e(f'v_or_b32 v{t0}, v{t0}, v{t3}')
        k.e(f'v_mul_lo_u32 v{t0}, v{t0}, s{S_T2}')
        k.e(f'v_add_u32 v{GWO[j]}, v{t0}, v{t2}')
        k.e(f'v_mul_lo_u32 v{t1}, v{t1}, s{S_T2}')
        k.e(f'v_add_u32 v{GW[j]}, v{t1}, v{t2}')
    k.e(f'v_lshlrev_b32 v{AB}, 4, v{L}')
    k.e(f'v_lshrrev_b32 v{t0}, 4, v{L}')
    k.e(f'v_lshlrev_b32 v{t0}, 2, v{t0}')
    k.e(f'v_bfe_u32 v{t1}, v{L}, 2, 2')
    k.e(f'v_add_u32 v{t0}, v{t0}, v{t1}')
    k.e(f's_lshl_b32 s{S_T0}, s{S_KQ}, 5')
    k.e(f'v_add_u32 v{t0}, s{S_T0}, v{t0}')
    k.e(f'v_mul_u32_u24 v{t0}, 160, v{t0}')
    k.e(f'v_and_b32 v{t1}, 3, v{L}')
    k.e(f'v_mul_u32_u24 v{t1}, 40, v{t1}')
    k.e(f'v_add_u32 v{AWR}, v{t0}, v{t1}')
    k.e(f'v_add_u32 v{AWR+1}, 40960, v{AWR}')
    k.e(f's_lshl_b32 s{S_T0}, s{S_RB}, 2')
    k.e(f's_lshl_b32 s{S_T1}, s{S_RP}, 1')
    k.e(f's_add_u32 s{S_T0}, s{S_T0}, s{S_T1}')
    k.e(f's_lshl_b32 s{S_T1}, s{S_KQ}, 10')
    k.e(f's_mul_i32 s{S_BH}, s{S_T0}, 49152')
    k.e(f's_add_u32 s{S_BH}, s{S_BH}, s{S_T1}')
    k.e(f's_add_u32 s{S_BH}, s{S_BH}, {WS_H}')
    k.e(f's_mul_i32 s{S_BO}, s{S_T0}, 20480')
    k.e(f's_add_u32 s{S_BO}, s{S_BO}, s{S_T1}')
    k.e(f's_add_u32 s{S_BO}, s{S_BO}, {WS_O}')
    k.e(f's_lshl_b32 s38, s{S_T0}, 4')
    k.e(f's_lshl_b32 s{S_SLOT}, s{S_WAVE}, 10')
    NSS = 17
    def bslot(ss):
        return BX if ss == 16 else BR + 8 * (ss & 3)
    def body(three):
        vq = VmQ(k)
        def issue_w(ss):
            sl = (ss & 3) * SLOT
            w2 = ss < 12
            sw = S_W2 if w2 else S_WO
            k.e(f's_mov_b32 s{S_SOFF}, {(ss if w2 else ss-12)*128*1280}')
            for j in range(3 if three else 2):
                k.e(f's_add_u32 m0, s{S_SLOT}, {sl + j*8192}')
                k.e('s_nop 0')
                vq.issue(('w', ss), f'buffer_load_dwordx4 v{(GW if w2 else GWO)[j]}, s[{sw}:{sw+3}], s{S_SOFF} offen lds')
        def issue_b(ss):
            w2 = ss < 12
            stride = 49152 if w2 else 20480
            for rt in range(2):
                k.e(f's_add_u32 s{S_SOFF}, s{S_BH if w2 else S_BO}, {(ss if w2 else ss-12)*4096 + rt*stride}')
                vq.issue(('b', ss), f'buffer_load_dwordx4 {V(bslot(ss) + 4*rt, 4)}, v{AB}, s[{S_WS}:{S_WS+3}], s{S_SOFF} offen {aux_ld}')
        for ss in range(3): issue_w(ss)
        if fused:
            k.e(f's_lshr_b32 s{S_T0}, s{S_RB}, 1'); k.e(f's_lshl_b32 s{S_T0}, s{S_T0}, 7'); k.e(f's_add_u32 s39, s{S_T0}, {FL_H}')
            if DIAG_F: stamp(k, 3)
            vq.drain()
            flag_wait(k, [('line', 39, 16, 8), ('kv',)], vt=72)
            if DIAG_F: stamp(k, 4)
        k.e(f'v_and_b32 v{t0}, 15, v{L}')
        k.e(f'v_add_u32 v{t0}, s38, v{t0}')
        k.e(f'v_lshlrev_b32 v{t0}, 2, v{t0}')
        k.e(f's_mov_b32 s{S_T1}, {WS_G}')
        vq.issue('g', f'buffer_load_dword v{G1[0]}, v{t0}, s[{S_WS}:{S_WS+3}], s{S_T1} offen {aux_ld}')
        vq.issue('g', f'buffer_load_dword v{G1[1]}, v{t0}, s[{S_WS}:{S_WS+3}], s{S_T1} offen offset:64 {aux_ld}')
        for ss in range(3): issue_b(ss)
        for ss in range(NSS):
            if ss == 12:
                if fused:
                    if DIAG_F: stamp(k, 5)
                    k.e(f's_lshl_b32 s{S_T0}, s{S_RB}, 7'); k.e(f's_add_u32 s39, s{S_T0}, {FL_O}')
                    k.e('s_barrier')
                    issue_w(15)
                    vq.drain()
                    flag_wait(k, [('line', 39, 8, 16)], vt=72)
                    if DIAG_F: stamp(k, 6)
                else:
                    k.e('s_barrier')
                    issue_w(15)
                for s2 in range(12, 17): issue_b(s2)
                for rt in range(2): k.e(f'v_sub_f32 v{G1[rt]}, 1.0, v{G1[rt]}')
                for rt in range(2):
                    for i in range(20): k.e(f'v_mul_f32 v{ACC+20*rt+i}, v{G1[rt]}, v{ACC+20*rt+i}')
            vq.wait([('w', ss), ('b', ss), 'g'])
            k.e('s_barrier')
            if ss + 3 < 12:
                issue_w(ss + 3); issue_b(ss + 3)
            elif ss + 3 < 15 and ss < 12:
                issue_w(ss + 3)
            elif ss == 13:
                issue_w(16)
            sl = (ss & 3) * SLOT
            base_off = sl if sl < 40960 else sl - 40960
            areg = AWR if sl < 40960 else AWR + 1
            for t in range(5):
                k.e(f'ds_read_b64_tr_b16 {V(WF+4*t,2)}, v{areg} offset:{base_off + 8*t}')
                k.e(f'ds_read_b64_tr_b16 {V(WF+4*t+2,2)}, v{areg} offset:{base_off + 8*t + 16*160}')
            for t in range(5):
                k.e(f's_waitcnt lgkmcnt({2*(4-t)})')
                for rt in range(2):
                    a = ACC + 20*rt + 4*t
                    src = '0' if ss == 0 else V(a, 4)
                    k.e(f'v_mfma_f32_16x16x32_bf16 {V(a,4)}, {V(WF+4*t,4)}, {V(bslot(ss) + 4*rt,4)}, {src}')
    la, lb = k.newlabel('fg3'), k.newlabel('fgend')
    k.e(f's_cmp_lt_u32 s{S_WAVE}, 4')
    k.e(f's_cbranch_scc1 {la}')
    body(False)
    k.e(f's_branch {lb}')
    k.label(la)
    body(True)
    k.label(lb)
    k.e('s_nop 7'); k.e('s_nop 1')
    k.e('s_barrier')
    OWN = [0, 9216, 15360, 24576]; NT = [3, 2, 3, 2]; TS = [[0,1,2],[3,4],[0,1,2],[3,4]]
    k.e(f'v_lshlrev_b32 v{t0}, 4, v{L}')
    k.e(f's_mul_i32 s{S_T0}, s{S_RP}, 30720')
    k.e(f'v_add_u32 v{t0}, s{S_T0}, v{t0}')
    labs = [k.newlabel(f'red{q}') for q in range(4)]
    lred = k.newlabel('redend')
    for q in range(1, 4):
        k.e(f's_cmp_eq_u32 s{S_KQ}, {q}'); k.e(f's_cbranch_scc1 {labs[q]}')
    for q in range(4):
        k.label(labs[q])
        for o in range(4):
            if o == q: continue
            si = (q - o - 1) % 4
            rt = o >> 1
            for ti, t in enumerate(TS[o]):
                off = OWN[o] + (si * NT[o] + ti) * 1024
                k.e(f'ds_write_b128 v{t0}, {V(ACC+20*rt+4*t,4)} offset:{off}')
        k.e('s_waitcnt lgkmcnt(0)')
        k.e('s_barrier')
        o = q; rt = o >> 1
        R = 72
        idx = 0
        for si in range(3):
            for ti, t in enumerate(TS[o]):
                off = OWN[o] + (si * NT[o] + ti) * 1024
                k.e(f'ds_read_b128 {V(R+4*idx,4)}, v{t0} offset:{off}')
                idx += 1
        k.e('s_waitcnt lgkmcnt(0)')
        idx = 0
        for si in range(3):
            for ti, t in enumerate(TS[o]):
                for i in range(4):
                    k.e(f'v_add_f32 v{ACC+20*rt+4*t+i}, v{ACC+20*rt+4*t+i}, v{R+4*idx+i}')
                idx += 1
        P = 72
        for ti, t in enumerate(TS[o]):
            a = ACC + 20*rt + 4*t
            k.e(f'v_cvt_pk_bf16_f32 v{P+2*ti}, v{a}, v{a+1}')
            k.e(f'v_cvt_pk_bf16_f32 v{P+2*ti+1}, v{a+2}, v{a+3}')
        k.e(f's_lshl_b32 s{S_T0}, s{S_RB}, 6')
        k.e(f's_lshl_b32 s{S_T1}, s{S_RP}, 5')
        k.e(f's_add_u32 s{S_T0}, s{S_T0}, s{S_T1}')
        k.e(f's_add_u32 s{S_T0}, s{S_T0}, {rt*16}')
        k.e(f'v_and_b32 v{t1}, 15, v{L}')
        k.e(f'v_add_u32 v{t1}, s{S_T0}, v{t1}')
        k.e(f's_movk_i32 s{S_T1}, 1280')
        k.e(f'v_mul_lo_u32 v{t1}, v{t1}, s{S_T1}')
        k.e(f'v_lshrrev_b32 v{t2}, 4, v{L}')
        k.e(f'v_mul_u32_u24 v{t2}, 40, v{t2}')
        k.e(f'v_add_u32 v{t1}, v{t1}, v{t2}')
        k.e(f's_mul_i32 s{S_T0}, s{S_CG}, 160')
        k.e(f's_add_u32 s{S_T0}, s{S_T0}, {8*TS[o][0]}')
        if NT[o] == 3:
            k.e(f'buffer_store_dwordx4 {V(P,4)}, v{t1}, s[{S_OUT}:{S_OUT+3}], s{S_T0} offen')
            k.e(f'buffer_store_dwordx2 {V(P+4,2)}, v{t1}, s[{S_OUT}:{S_OUT+3}], s{S_T0} offen offset:16')
        else:
            k.e(f'buffer_store_dwordx4 {V(P,4)}, v{t1}, s[{S_OUT}:{S_OUT+3}], s{S_T0} offen')
        if q < 3: k.e(f's_branch {lred}')
    k.label(lred)
DIAG_F = False

PTR = dict(x=82, wq=84, wk=86, wv=88, wo=90, w1=92, w3=94, w2=96, gate=98, out=100, dbg=S_DBG, ws=54)
def gen_fused(diag=False, prefetch=True, prio=None, opts=()):
    global DIAG_F
    DIAG_F = diag
    roles_a.DIAG = False
    roles_g.DIAGG = False
    st = (lambda k, i: stamp(k, i)) if diag else (lambda k, i: None)
    k = Kern()
    k.e('s_cmp_ge_u32 s2, 512')
    k.e('s_cbranch_scc1 done')
    for n, r in PTR.items(): k.e(f's_load_dwordx2 s[{r}:{r+1}], s[0:1], {KA[n]}')
    k.e('s_cmp_ge_u32 s2, 256')
    k.e('s_cbranch_scc1 grole')
    st(k, 0)
    a_setup(k, 2)
    k.e('s_waitcnt lgkmcnt(0)')
    srd(k, S_X, PTR['x'], 2048*1280); srd(k, S_W, PTR['wq'], 640*1280); srd(k, S_WS, PTR['ws'], WS_SIZE); srd(k, 44, PTR['gate'], 1280)
    k.e(f's_and_b32 s{S_T0}, s{S_HG}, 1')
    k.e(f's_cmp_eq_u32 s{S_T0}, 0')
    k.e(f's_cselect_b32 s{S_M}, s{PTR["wk"]}, s{PTR["wv"]}')
    k.e(f's_cselect_b32 s{S_M+1}, s{PTR["wk"]+1}, s{PTR["wv"]+1}')
    k.e(f's_mov_b32 s{S_M+2}, 25600'); k.e(f's_mov_b32 s{S_M+3}, 0x00020000')
    def mid(k, issue12, n):
        kvproj(k)
        nonce_publish(k, 124)
        if prefetch:
            k.e('s_lshr_b32 s48, s2, 3'); k.e('s_mul_i32 s48, s48, 20'); k.e('s_mov_b32 s49, 0')
            n1 = pf_rows(k, S_W, 124, 125, V_LANE, 56, 48, 20, 1280, 49, 10, s_wave=S_WAVE, wave_off=3, nwaves=4)
            k.e(f's_lshl_b32 s48, s{S_RB}, 6'); k.e(f's_lshl_b32 s50, s{S_HG}, 3'); k.e('s_add_u32 s48, s48, s50')
            pf_rows(k, S_X, 124, 125, V_LANE, 56, 48, 8, 1280, 49, 10, s_wave=S_WAVE, wave_off=3, nwaves=4, wave_base=n1)
            l1, l2, l3 = k.newlabel('pw'), k.newlabel('pw'), k.newlabel('pw')
            k.e(f's_cmp_lt_u32 s{S_WAVE}, 3'); k.e(f's_cbranch_scc1 {l1}')
            k.e(f's_cmp_eq_u32 s{S_WAVE}, 7'); k.e(f's_cbranch_scc1 {l1}')
            k.e(f's_cmp_lt_u32 s{S_WAVE}, 5'); k.e(f's_cbranch_scc1 {l2}')
            k.e('s_waitcnt vmcnt(1)'); k.e(f's_branch {l3}')
            k.label(l2); k.e('s_waitcnt vmcnt(2)'); k.e(f's_branch {l3}')
            k.label(l1); k.e('s_waitcnt vmcnt(0)')
            k.label(l3)
            k.e('s_barrier')
        else:
            k.e('s_waitcnt vmcnt(0)'); k.e('s_barrier')
        st(k, 1)
        kvproj_compute(k, aux='sc1')
        lab = k.newlabel('nn')
        k.e(f's_cmp_lg_u32 s{S_WAVE}, {SW}'); k.e(f's_cbranch_scc1 {lab}')
        nonce_get(k, 124)
        k.label(lab)
        k.e('s_barrier')
        issue12()
        k.e(f's_waitcnt vmcnt({2*n})')
        st(k, 2)
    def after_c0(k):
        lab = k.newlabel('kvf')
        k.e(f's_cmp_lg_u32 s{S_WAVE}, {SW}'); k.e(f's_cbranch_scc1 {lab}')
        k.e(f's_lshl_b32 s{S_T0}, s2, 3'); k.e(f's_add_u32 s{S_T0}, s{S_T0}, {FL_KV}')
        flag_set(k, S_T0, 124)
        k.label(lab)
    qproj(k, mid=mid, after_c0=after_c0)
    st(k, 3)
    attn_addr(k)
    flag_wait(k, [('kv',)], vt=32)
    st(k, 4)
    k.e(f'v_and_b32 v{V_T}, 31, v{V_LANE}')
    k.e(f's_lshl_b32 s{S_T0}, s{S_RB}, 6'); k.e(f's_lshl_b32 s{S_T1}, s{S_QH}, 5'); k.e(f's_add_u32 s{S_T0}, s{S_T0}, s{S_T1}')
    k.e(f'v_add_u32 v{V_T}, s{S_T0}, v{V_T}'); k.e(f'v_lshlrev_b32 v{V_T}, 2, v{V_T}')
    k.e(f's_mov_b32 s{S_T2}, {WS_G}')
    k.e(f'buffer_load_dword v{V_G}, v{V_T}, s[{S_WS}:{S_WS+3}], s{S_T2} offen sc1')
    attn_main(k, aux='sc1')
    st(k, 5)
    attn_store2(k, aux='sc1')
    k.e('s_waitcnt vmcnt(0)')
    k.e('s_barrier')
    lab = k.newlabel('of')
    k.e(f's_cmp_lg_u32 s{S_WAVE}, {SW}'); k.e(f's_cbranch_scc1 {lab}')
    k.e(f's_lshl_b32 s{S_T0}, s{S_RB}, 7'); k.e(f's_lshl_b32 s{S_T1}, s{S_HG}, 4'); k.e(f's_add_u32 s{S_T0}, s{S_T0}, s{S_T1}'); k.e(f's_add_u32 s{S_T0}, s{S_T0}, {FL_O}')
    flag_set(k, S_T0, 32)
    k.label(lab)
    st(k, 6)
    if diag: stamp_dump(k, 7, S_WS, 2, S_WAVE)
    k.e('s_endpgm')
    k.label('grole')
    k.e('s_sub_u32 s2, s2, 256')
    st(k, 0)
    g_setup(k, 2); stagea_ids(k, 2)
    k.e('s_waitcnt lgkmcnt(0)')
    srd(k, S_X, PTR['x'], 2048*1280); srd(k, 8, PTR['w1'], 640*3072); srd(k, 16, PTR['w3'], 640*3072); srd(k, S_WS, PTR['ws'], WS_SIZE)
    def g_nonce(k):
        lab = k.newlabel('nn')
        k.e(f's_cmp_lg_u32 s{S_WAVE}, {SW}'); k.e(f's_cbranch_scc1 {lab}')
        nonce_get(k, 20)
        k.label(lab)
    def pf_first(k):
        k.e('s_bfe_u32 s40, s2, 0x10002'); k.e('s_lshl_b32 s40, s40, 10'); k.e('s_lshr_b32 s41, s2, 3'); k.e('s_lshl_b32 s42, s41, 5'); k.e('s_add_u32 s40, s40, s42')
        k.e('s_mov_b32 s43, 0')
        n = pf_rows(k, S_X, 124, 125, V_LANE, 56, 40, 32, 1280, 43, 10, s_wave=S_WAVE, nwaves=4, wave_off=4)
        k.e('s_mul_i32 s40, s41, 20'); k.e('s_and_b32 s43, s2, 3'); k.e('s_mul_i32 s43, s43, 768')
        n2 = pf_rows(k, 8, 124, 125, V_LANE, 56, 40, 20, 3072, 43, 6, s_wave=S_WAVE, wave_base=n, nwaves=4, wave_off=4)
        pf_rows(k, 16, 124, 125, V_LANE, 56, 40, 20, 3072, 43, 6, s_wave=S_WAVE, wave_base=n+n2, nwaves=4, wave_off=4)
        return 2
    def pf_last(k):
        srd(k, 48, PTR['w2'], 1536*1280)
        k.e('s_lshr_b32 s41, s2, 3'); k.e('s_mul_i32 s40, s41, 48'); k.e('s_mov_b32 s43, 0')
        n = pf_rows(k, 48, 124, 125, V_LANE, 56, 40, 48, 1280, 43, 10, s_wave=S_WAVE, nwaves=4, wave_off=4)
        srd(k, 48, PTR['wo'], 640*1280)
        k.e('s_mul_i32 s40, s41, 20')
        pf_rows(k, 48, 124, 125, V_LANE, 56, 40, 20, 1280, 43, 10, s_wave=S_WAVE, wave_base=n, nwaves=4, wave_off=4)
    if 'gwait' in opts:
        if prefetch:
            pf_first(k)
        lab = k.newlabel('nn')
        k.e(f's_cmp_lg_u32 s{S_WAVE}, {SW}'); k.e(f's_cbranch_scc1 {lab}')
        nonce_get(k, 12)
        k.label(lab)
        flag_wait(k, [('kv',)], vt=12)
    st(k, 1)
    stagea(k, aux='sc1', prio=prio, pf_first=pf_first if (prefetch and 'gwait' not in opts) else None, pf_last=pf_last if prefetch else None, mid_hook=g_nonce)
    k.e('s_barrier')
    lab = k.newlabel('hf')
    k.e(f's_cmp_lg_u32 s{S_WAVE}, {SW}'); k.e(f's_cbranch_scc1 {lab}')
    k.e(f's_lshl_b32 s{S_T0}, s{S_RBK}, 7'); k.e(f's_lshl_b32 s{S_T1}, s{S_FB}, 3'); k.e(f's_add_u32 s{S_T0}, s{S_T0}, s{S_T1}'); k.e(f's_add_u32 s{S_T0}, s{S_T0}, {FL_H}')
    flag_set(k, S_T0, 12)
    k.label(lab)
    st(k, 2)
    k.e(f's_and_b32 s{S_T0}, s2, 7'); k.e(f's_lshl_b32 s{S_T0}, s{S_T0}, 2'); k.e(f's_lshr_b32 s{S_T1}, s2, 6'); k.e(f's_add_u32 s{S_RB}, s{S_T0}, s{S_T1}')
    k.e(f's_bfe_u32 s{S_CG}, s2, 0x30003')
    srd(k, 8, PTR['w2'], 1536*1280); srd(k, 16, PTR['wo'], 640*1280); srd(k, 44, PTR['out'], 2048*1280)
    if prio is not None: k.e(f's_setprio {prio}')
    final2(k, True)
    k.e('s_waitcnt vmcnt(0)')
    st(k, 7)
    if diag:
        k.e('s_add_u32 s2, s2, 256')
        stamp_dump(k, 8, S_WS, 2, S_WAVE)
    k.label('done')
    name = 'gated_mix__grouped_kv_mqa__glu_gated_swiglu__prompt_kernel'
    return file_text([(name, 512, 512, 81920)], [kernel_text(name, k.text(), 128)])
if __name__ == '__main__':
    open('v2.s', 'w').write(gen_fused(False))
    open('v2s.s', 'w').write(gen_fused(True))
    open('v2a.s', 'w').write(gen_fused(True, prio=3))
    open('v2b.s', 'w').write(gen_fused(True, prio=3, opts=('gwait',)))
    open('v2c.s', 'w').write(gen_fused(True, prio=None, opts=('gwait',)))
```
